```python
import torch

def _softmax(x, axis=-1):
    return torch.softmax(x, dim=axis)
def _gelu(x):
    return torch.nn.functional.gelu(x, approximate="tanh")
def _silu(x):
    return torch.nn.functional.silu(x)
def _sigmoid(x):
    return torch.sigmoid(x)
def _layernorm(x, axis=-1, eps=1e-5):
    m = x.mean(dim=axis, keepdim=True)
    v = x.var(dim=axis, keepdim=True, unbiased=False)
    return (x - m) / torch.sqrt(v + eps)
def _scatter_add(tgt, idx, src, axis=0):
    return tgt.clone().index_add_(axis, idx, src)
def _segment_sum(src, seg, n):
    out = torch.zeros((n,) + src.shape[1:], dtype=src.dtype)
    return out.index_add_(0, seg, src)
def _pad(x, pw):
    flat = tuple(v for pair in reversed(pw) for v in pair)
    return torch.nn.functional.pad(x, flat)

kernel_name = 'recurrent_scan__gqa_block_cached__glu_gated_reglu__decode'

def setup_inputs():

    _w = (lambda a: (lambda t: t.to(torch.bfloat16) if t.is_floating_point() else t)(torch.as_tensor(a)))
    def _A_setup():
        B, Sq, D = 4, 1, 640
        Hq, Hkv, Sk, Dh = 32, 32, 4096, 192
        assert Hq % Hkv == 0, (Hq, Hkv)
        return {
            "x": _w((lambda *s: torch.randn(*s, dtype=torch.bfloat16) * 0.05)(B, Sq, D)),
            "k_cache": _w((lambda *s: torch.randn(*s, dtype=torch.bfloat16) * 3.2)(B, Hkv, Sk, Dh)),
            "v_cache": _w((lambda *s: torch.randn(*s, dtype=torch.bfloat16) * 3.2)(B, Hkv, Sk, Dh)),
            "wq": _w((lambda *s: torch.randn(*s, dtype=torch.bfloat16) * 3.2)(D, Hq * Dh) * (D ** -0.5)),
            "wo": _w((lambda *s: torch.randn(*s, dtype=torch.bfloat16) * 3.2)(Hq * Dh, D) * ((Hq * Dh) ** -0.5)),
        }
    _A_in = _A_setup()

    def _B_setup():
        B, S, D, F = 4, 1, 640, 1536
        return {
            "x": _w((lambda *s: torch.randn(*s, dtype=torch.bfloat16) * 0.05)(B, S, D)),
            "W_gate": _w((lambda *s: torch.randn(*s, dtype=torch.bfloat16) * 0.4)(D, F) * (2.0 / D) ** 0.5),
            "W_up": _w((lambda *s: torch.randn(*s, dtype=torch.bfloat16) * 0.4)(D, F) * (2.0 / D) ** 0.5),
            "W_down": _w((lambda *s: torch.randn(*s, dtype=torch.bfloat16) * 0.4)(F, D) * (1.0 / F) ** 0.5),
        }
    _B_in = _B_setup()

    return {
        "A_x": _A_in["x"],
        "A_k_cache": _A_in["k_cache"],
        "A_v_cache": _A_in["v_cache"],
        "A_wq": _A_in["wq"],
        "A_wo": _A_in["wo"],
        "B_x": _B_in["x"],
        "B_W_gate": _B_in["W_gate"],
        "B_W_up": _B_in["W_up"],
        "B_W_down": _B_in["W_down"],
    }

def reference(A_x, A_k_cache, A_v_cache, A_wq, A_wo, B_x, B_W_gate, B_W_up, B_W_down):
    def _A_ref(x, k_cache, v_cache, wq, wo):
        B, Sq, D = x.shape
        Hq, Dh = 32, 192
        Hkv = k_cache.shape[1]
        rep = Hq // Hkv
        q = (lambda x, *d: x.permute(*d))((x @ wq).reshape(B, Sq, Hq, Dh), 0, 2, 1, 3)
        k = (lambda x, n, axis: torch.repeat_interleave(x, n, dim=axis))(k_cache, rep, axis=1)
        v = (lambda x, n, axis: torch.repeat_interleave(x, n, dim=axis))(v_cache, rep, axis=1)
        scores = torch.einsum("bhqd,bhkd->bhqk", q, k) * (Dh ** -0.5)
        p = _softmax(scores, axis=-1)
        o = torch.einsum("bhqk,bhkd->bhqd", p, v)
        return (lambda x, *d: x.permute(*d))(o, 0, 2, 1, 3).reshape(B, Sq, Hq * Dh) @ wo

    def _B_ref(x, W_gate, W_up, W_down):
        gate = torch.einsum("bsd,df->bsf", x, W_gate)
        up = torch.einsum("bsd,df->bsf", x, W_up)
        gate = gate * (lambda x, dt: x.to(dt))(gate > 0, gate.dtype)
        h = gate * up
        return torch.einsum("bsf,fd->bsd", h, W_down)

    x = A_x
    xn = _layernorm(x, axis=-1)
    s = _A_ref(xn, A_k_cache, A_v_cache, A_wq, A_wo)
    g = _silu(_B_ref(xn, B_W_gate, B_W_up, B_W_down))
    return x + s * g
```

```python
import sys

NAME = "recurrent_scan__gqa_block_cached__glu_gated_reglu__decode"

HEADER = """; Kernarg layout for this problem (96 bytes, ptrs only, base s[0:1]):
"""

WS_E = 0
WS_QX = 0x001000
WS_FX1 = 0x110000
WS_FX2 = 0x210000
WS_OX = 0x290000
OX_STRIDE = 1088
WS_YX = 0x2e0000
WS_STAMP = 0x400000

L_WQ = 0
L_WO = 30720
L_WG = 61440
L_WU = 69632
L_WD = 77824
L_XN = 86016
L_Q = 91136
L_SC = 91648
L_MX = 99840
L_LS = 99856
L_HB = 99904
L_RD = 100416
L_OB = 106560
L_END = 108096

CHUNK = 786432
KV_BYTES = 201326592
LOG2E = 0x3fb8aa3b
SCALE = 0x3d93cd3a


class Gen:
    def __init__(self):
        self.L = []
        self.uid = 0

    def __call__(self, s):
        for line in s.split("\n"):
            line = line.strip()
            if line:
                self.L.append(line if line.endswith(":") else "  " + line)

    def label(self, base):
        self.uid += 1
        return f"L_{base}_{self.uid}"

    def text(self):
        return "\n".join(self.L) + "\n"


def gen(rot=1, mapping="xcd", xk=0, xv=0, sleep=1, stamps=False, inval=True, dbg=None, n1=2, spin=20000):
    A = Gen()
    nstamp = [0]

    def stamp(i):
        if stamps:
            A(f"s_memrealtime s[96:97]\ns_waitcnt lgkmcnt(0)\nv_writelane_b32 v255, s96, {i}")

    def allsum64(v, t, op="v_add_f32"):
        dpp = op + "_dpp"
        A("s_nop 1")
        A(f"{dpp} v{v}, v{v}, v{v} quad_perm:[1,0,3,2] row_mask:0xf bank_mask:0xf\ns_nop 1")
        A(f"{dpp} v{v}, v{v}, v{v} quad_perm:[2,3,0,1] row_mask:0xf bank_mask:0xf\ns_nop 1")
        A(f"{dpp} v{v}, v{v}, v{v} row_half_mirror row_mask:0xf bank_mask:0xf\ns_nop 1")
        A(f"{dpp} v{v}, v{v}, v{v} row_mirror row_mask:0xf bank_mask:0xf")
        rowsum(v, t, op)

    def rowsum(v, t, op="v_add_f32"):
        A(f"v_mov_b32 v{t}, v{v}\ns_nop 1\nv_permlane16_swap_b32 v{v}, v{t}\n{op} v{v}, v{v}, v{t}")
        A(f"v_mov_b32 v{t}, v{v}\ns_nop 1\nv_permlane32_swap_b32 v{v}, v{t}\n{op} v{v}, v{v}, v{t}")

    def gather(loads, checks, sbase, after_issue=None):
        for ld in loads:
            A(ld)
        if after_issue:
            after_issue()
        top = A.label("poll")
        done = A.label("got")
        cnt = sbase + 2 * len(loads) + 2
        A(f"s_mov_b32 s{cnt}, {spin}")
        A(f"{top}:")
        A("s_waitcnt vmcnt(0)")
        n = len(loads)
        for i, (kind, r) in enumerate(checks):
            m = sbase + 2 * i
            if kind == 64:
                A(f"v_cmp_ne_u64 s[{m}:{m+1}], v[{r}:{r+1}], v[{VT}:{VT+1}]")
            else:
                A(f"v_cmp_ne_u32 s[{m}:{m+1}], v{r}, v{VT}")
        acc = sbase + 2 * n
        A(f"s_or_b64 s[{acc}:{acc+1}], s[{sbase}:{sbase+1}], s[{sbase+2}:{sbase+3}]")
        for i in range(2, n):
            m = sbase + 2 * i
            A(f"s_or_b64 s[{acc}:{acc+1}], s[{acc}:{acc+1}], s[{m}:{m+1}]")
        A(f"s_cbranch_scc0 {done}")
        A(f"s_sub_u32 s{cnt}, s{cnt}, 1\ns_cbranch_scc1 {done}")
        if sleep:
            A(f"s_sleep {sleep}")
        for i, ld in enumerate(loads):
            m = sbase + 2 * i
            A(f"s_mov_b64 exec, s[{m}:{m+1}]")
            A(ld)
        A("s_mov_b64 exec, -1")
        A(f"s_branch {top}")
        A(f"{done}:")

    A(f"{NAME}_kernel:")
    A("s_load_dwordx16 s[4:19], s[0:1], 0")
    A("s_load_dwordx8 s[20:27], s[0:1], 64")
    A("s_cmp_ge_u32 s2, 256\ns_cbranch_scc1 L_end")
    if stamps:
        A("s_memrealtime s[98:99]")
    A("v_lshrrev_b32 v2, 6, v0\nv_and_b32 v1, 63, v0")
    if mapping == "xcd":
        A("s_and_b32 s28, s2, 7\ns_lshl_b32 s28, s28, 2\ns_lshr_b32 s29, s2, 6\ns_add_u32 s28, s28, s29")
        A("s_bfe_u32 s29, s2, 0x30003")
    elif mapping == "lin":
        A("s_lshr_b32 s28, s2, 3\ns_and_b32 s29, s2, 7")
    A("v_readfirstlane_b32 s3, v2")
    A("s_lshr_b32 s30, s29, 1")
    A("v_lshrrev_b32 v2, 3, v1\nv_and_b32 v3, 7, v1")
    if stamps:
        A("v_mov_b32 v255, 0")
    A("s_cmp_ge_u32 s3, 4\ns_cbranch_scc1 L_helper")

    VO = [4, 5, 6, 7]
    VS = 8
    VM = 12
    VQ = 16
    VA = 28
    VSEL = 40
    VP = 44
    VSC = 48
    VTMP = 52
    VB = 64
    A("s_lshl_b32 s31, s30, 5\ns_add_u32 s31, s31, s28\ns_lshl_b32 s31, s31, 1\ns_and_b32 s32, s29, 1\ns_add_u32 s31, s31, s32")
    A(f"s_mul_i32 s32, s31, {CHUNK}\ns_mul_i32 s33, s3, 12288\ns_add_u32 s32, s32, s33")
    A(f"v_mul_u32_u24 v4, 384, v2\nv_lshl_add_u32 v4, v3, 4, v4\nv_add_u32 v4, s32, v4")
    A("v_add_u32 v5, 3072, v4\nv_add_u32 v6, 6144, v4\nv_add_u32 v7, 9216, v4")
    A(f"s_mul_i32 s34, s31, {rot}\ns_and_b32 s34, s34, 15\ns_mul_i32 s34, s34, 49152")
    A(f"s_mov_b32 s38, {KV_BYTES}\ns_mov_b32 s39, 0x20000\ns_mov_b32 s42, {KV_BYTES}\ns_mov_b32 s43, 0x20000")
    A("s_waitcnt lgkmcnt(0)")
    A("s_mov_b32 s36, s6\ns_mov_b32 s37, s7\ns_mov_b32 s40, s6\ns_mov_b32 s41, s7")

    def ld(gi, srd, soff):
        for jj in range(3):
            r = VB + gi * 12 + jj * 4
            A(f"buffer_load_dwordx4 v[{r}:{r+3}], v{VO[gi]}, s[{srd}:{srd+3}], {soff} offen offset:{jj*128} nt")

    A("s_barrier")
    for gi in range(n1):
        ld(gi, 36, "s34")
    A(f"s_lshl_b32 s33, s3, 11\ns_add_u32 s33, s33, {L_SC}\nv_lshl_add_u32 v{VS}, v2, 4, s33")
    A(f"v_lshrrev_b32 v9, 1, v3\nv_and_b32 v10, 1, v3\nv_lshlrev_b32 v10, 4, v10\nv_mov_b32 v11, 0xffff\nv_lshlrev_b32 v10, v10, v11")
    for r in range(4):
        A(f"v_cmp_eq_u32 vcc, {r}, v9\ns_nop 1\nv_cndmask_b32 v{VM+r}, 0, v10, vcc")
    for r in range(12):
        A(f"v_mov_b32 v{VA+r}, 0")
    A(f"v_lshlrev_b32 v9, 4, v3\nv_add_u32 v9, {L_Q}, v9")
    A("s_mov_b32 s44, 0x01010101\ns_mov_b32 s45, 0x01010101")
    A("s_barrier")
    A("s_barrier")
    for gi in range(n1, 2):
        ld(gi, 36, "s34")
    if xk:
        ld(2, 36, "s34")
        ld(3, 36, "s34")
    stamp(1)
    A("s_barrier")
    for jj in range(3):
        A(f"ds_read_b128 v[{VQ+4*jj}:{VQ+4*jj+3}], v9 offset:{jj*128}")
    stamp(2)
    A("s_mov_b32 s46, 0")
    A("s_waitcnt lgkmcnt(0)")

    def step_head(last_fix):
        A(f"s_add_u32 s35, s34, 49152\ns_cmp_ge_u32 s35, {CHUNK}\ns_cselect_b32 s35, 0, s35")
        A("s_cmp_eq_u32 s46, 15")
        last_fix()

    def slot_loads(gi, x):
        if gi < 2:
            if x:
                sk = A.label("skip")
                A(f"s_cmp_eq_u32 s46, 0\ns_cbranch_scc1 {sk}")
                ld(gi + 2, 36, "s34")
                A(f"{sk}:")
            else:
                ld(gi + 2, 36, "s34")
        else:
            ld(gi - 2, 40, "s35")

    A("L_kloop:")
    step_head(lambda: A("s_cselect_b32 s40, s8, s6\ns_cselect_b32 s41, s9, s7"))
    for gi in range(4):
        A("s_waitcnt vmcnt(3)")
        slot_loads(gi, xk)
        b = VB + gi * 12
        t = VTMP
        for k in range(4):
            for jj in range(3):
                src = "0" if k == 0 else f"v{t+jj}"
                A(f"v_dot2_f32_bf16 v{t+jj}, v{b+4*jj+k}, v{VQ+4*jj+k}, {src}")
        A("s_nop 2")
        A(f"v_add_f32 v{t}, v{t}, v{t+1}\nv_add_f32 v{t}, v{t}, v{t+2}")
        A(f"s_nop 1\nv_add_f32_dpp v{t}, v{t}, v{t} quad_perm:[1,0,3,2] row_mask:0xf bank_mask:0xf")
        A(f"s_nop 1\nv_add_f32_dpp v{t}, v{t}, v{t} quad_perm:[2,3,0,1] row_mask:0xf bank_mask:0xf")
        A(f"s_nop 1\nv_add_f32_dpp v{VSC+gi}, v{t}, v{t} row_half_mirror row_mask:0xf bank_mask:0xf")
    A(f"s_mov_b64 exec, s[44:45]\nds_write_b128 v{VS}, v[{VSC}:{VSC+3}]\ns_mov_b64 exec, -1")
    A(f"v_add_u32 v{VS}, 128, v{VS}")
    A("s_mov_b32 s34, s35\ns_add_u32 s46, s46, 1\ns_cmp_lt_u32 s46, 16\ns_cbranch_scc1 L_kloop")
    A("s_mov_b32 s36, s8\ns_mov_b32 s37, s9")
    if xv:
        ld(2, 36, "s34")
        ld(3, 36, "s34")
    stamp(3)
    A(f"v_lshl_add_u32 v9, v1, 4, s33")
    A("s_waitcnt lgkmcnt(0)")
    t = VTMP
    A(f"ds_read_b128 v[{t}:{t+3}], v9\nds_read_b128 v[{t+4}:{t+7}], v9 offset:1024")
    A(f"s_mov_b32 s47, {SCALE}\ns_mov_b32 s48, {LOG2E}\ns_mov_b32 s49, 0xffff0000")
    A(f"v_subrev_u32 v{VS}, 2048, v{VS}")
    A("s_waitcnt lgkmcnt(0)")
    for rnd in range(2):
        for i in range(4):
            A(f"v_cvt_pk_bf16_f32 v{VSC+i}, v{t+2*i}, v{t+2*i+1}")
        for i in range(4):
            A(f"v_lshlrev_b32 v{t+2*i}, 16, v{VSC+i}\nv_and_b32 v{t+2*i+1}, s49, v{VSC+i}")
        if rnd == 0:
            for i in range(8):
                A(f"v_mul_f32 v{t+i}, s47, v{t+i}")
    A(f"v_max3_f32 v{t+8}, v{t}, v{t+1}, v{t+2}\nv_max3_f32 v{t+9}, v{t+3}, v{t+4}, v{t+5}")
    A(f"v_max3_f32 v{t+8}, v{t+8}, v{t+6}, v{t+7}\nv_max_f32 v{t+8}, v{t+8}, v{t+9}")
    allsum64(t + 8, t + 9, "v_max_f32")
    A(f"s_lshl_b32 s50, s3, 2\ns_add_u32 s50, s50, {L_MX}\nv_mov_b32 v10, s50\nv_mov_b32 v11, {L_MX}")
    A(f"s_mov_b64 exec, 1\nds_write_b32 v10, v{t+8}\ns_mov_b64 exec, -1")
    A("s_waitcnt lgkmcnt(0)\ns_barrier")
    A(f"ds_read_b128 v[{VSC}:{VSC+3}], v11")
    A("s_waitcnt lgkmcnt(0)")
    A(f"v_max3_f32 v{t+8}, v{VSC}, v{VSC+1}, v{VSC+2}\nv_max_f32 v{t+8}, v{t+8}, v{VSC+3}")
    for i in range(8):
        A(f"v_sub_f32 v{t+i}, v{t+i}, v{t+8}")
    for i in range(8):
        A(f"v_mul_f32 v{t+i}, s48, v{t+i}")
    for i in range(8):
        A(f"v_exp_f32 v{t+i}, v{t+i}")
    A(f"v_add_f32 v{t+8}, v{t}, v{t+1}\nv_add_f32 v{t+9}, v{t+2}, v{t+3}\nv_add_f32 v{t+10}, v{t+4}, v{t+5}\nv_add_f32 v{t+11}, v{t+6}, v{t+7}")
    for i in range(8):
        A(f"v_cvt_pk_bf16_f32 v{t+i}, v{t+i}, v{t+i}")
    A(f"ds_write_b128 v9, v[{t}:{t+3}]\nds_write_b128 v9, v[{t+4}:{t+7}] offset:1024")
    A(f"ds_read_b128 v[{VP}:{VP+3}], v{VS}")
    A(f"v_add_f32 v{t+8}, v{t+8}, v{t+9}\nv_add_f32 v{t+10}, v{t+10}, v{t+11}\nv_add_f32 v{t+8}, v{t+8}, v{t+10}")
    allsum64(t + 8, t + 9)
    A(f"s_mov_b64 exec, 1\nds_write_b32 v10, v{t+8} offset:16\ns_mov_b64 exec, -1")
    A("s_mov_b32 s46, 0")
    stamp(4)
    A("L_vloop:")
    step_head(lambda: A(f"s_cselect_b32 s42, 0, {KV_BYTES}"))
    for gi in range(4):
        A("s_waitcnt vmcnt(3)" + (" lgkmcnt(0)" if gi == 0 else ""))
        slot_loads(gi, xv)
        for r in range(4):
            A(f"v_and_b32 v{VSEL+r}, v{VP+gi}, v{VM+r}")
        if gi == 3:
            A(f"v_add_u32 v{VS}, 128, v{VS}\ns_nop 0")
        else:
            A("s_nop 1")
        b = VB + gi * 12
        for jj in range(3):
            A(f"v_mfma_f32_16x16x32_bf16 v[{VA+4*jj}:{VA+4*jj+3}], v[{VSEL}:{VSEL+3}], v[{b+4*jj}:{b+4*jj+3}], v[{VA+4*jj}:{VA+4*jj+3}]")
        if gi == 3:
            A(f"ds_read_b128 v[{VP}:{VP+3}], v{VS}")
    A("s_mov_b32 s34, s35\ns_add_u32 s46, s46, 1\ns_cmp_lt_u32 s46, 16\ns_cbranch_scc1 L_vloop")
    A(f"v_lshrrev_b32 v9, 5, v1\ns_lshl_b32 s50, s3, 1\nv_add_u32 v9, s50, v9\nv_mul_u32_u24 v9, 768, v9")
    A(f"v_lshl_add_u32 v9, v3, 5, v9\nv_and_b32 v10, 16, v1\nv_add_u32 v9, v9, v10\nv_add_u32 v9, {L_RD}, v9")
    A("s_mov_b32 s50, 0x00ff00ff\ns_mov_b32 s51, 0xff00ff00\ns_mov_b64 exec, s[50:51]")
    for jj in range(3):
        A(f"ds_write_b128 v9, v[{VA+4*jj}:{VA+4*jj+3}] offset:{jj*256}")
    A("s_mov_b64 exec, -1")
    stamp(5)
    A("s_waitcnt lgkmcnt(0)\ns_barrier")
    if stamps:
        A("s_branch L_stampout")
    else:
        A("s_endpgm")

    VT = 4
    A("L_helper:")
    A("s_sub_u32 s33, s3, 4")
    A("s_mul_i32 s34, s33, 1280\nv_lshl_add_u32 v6, v1, 2, s34\nv_mov_b32 v7, 0")
    A("v_mul_u32_u24 v8, 12288, v2\nv_lshl_add_u32 v8, v3, 4, v8")
    A(f"s_mul_i32 s35, s29, {80*12288}\ns_mul_i32 s36, s28, 384\ns_add_u32 s35, s35, s36\ns_mul_i32 s36, s33, {8*12288}\ns_add_u32 s35, s35, s36")
    A(f"s_lshl_b32 s36, s33, 10")
    A(f"s_mov_b32 s42, {640*12288}\ns_mov_b32 s43, 0x20000")
    A("s_waitcnt lgkmcnt(0)")
    A("s_mov_b32 s40, s10\ns_mov_b32 s41, s11")
    A(f"global_load_dword v{VT}, v7, s[26:27] sc1")
    VX = 10
    for k in range(5):
        A(f"global_load_dword v{VX+k}, v6, s[4:5] offset:{k*256}")
    for i in range(3):
        if i == 2:
            A("s_cmp_ge_u32 s33, 2\ns_cbranch_scc1 L_wqdone")
        for cbk in range(3):
            A(f"s_add_u32 m0, s36, {L_WQ + cbk*10240 + i*4096 - cbk*128}")
            if cbk == 0 and i > 0:
                A(f"s_add_u32 s35, s35, {32*12288}")
            else:
                A("s_nop 0")
            A(f"buffer_load_dwordx4 v8, s[40:43], s35 offen offset:{cbk*128} nt lds")
    A("L_wqdone:")
    A("s_barrier")
    A("v_mul_u32_u24 v8, 205, v1\nv_lshrrev_b32 v8, 11, v8\nv_mul_u32_u24 v9, 10, v8\nv_sub_u32 v9, v1, v9")
    A("v_mul_u32_u24 v8, 1280, v8\nv_lshl_add_u32 v8, v9, 4, v8")
    A(f"s_mov_b32 s44, s12\ns_mov_b32 s45, s13\ns_mov_b32 s46, {6144*1280}\ns_mov_b32 s47, 0x20000")
    A(f"s_mul_i32 s35, s28, {192*1280}\ns_mul_i32 s36, s29, 160\ns_add_u32 s35, s35, s36\ns_mul_i32 s36, s33, {48*1280}\ns_add_u32 s35, s35, s36")
    A(f"s_mul_i32 s36, s33, 7680")
    A("s_mov_b32 s38, -1\ns_mov_b32 s39, 0x0fffffff\ns_mov_b64 exec, s[38:39]")
    for i in range(8):
        A(f"s_add_u32 m0, s36, {L_WO + i*960}")
        A(f"s_add_u32 s35, s35, {6*1280}" if i else "s_nop 0")
        A(f"buffer_load_dwordx4 v8, s[44:47], s35 offen nt lds")
    A("s_mov_b64 exec, -1")
    A("s_min_u32 s32, s2, 239\ns_mul_i32 s31, s32, 205\ns_lshr_b32 s31, s31, 11\ns_mul_i32 s36, s31, 10\ns_sub_u32 s32, s32, s36")
    A("v_mul_u32_u24 v8, 3072, v2\nv_lshl_add_u32 v8, v3, 4, v8\nv_mul_u32_u24 v9, 1280, v2\nv_lshl_add_u32 v9, v3, 4, v9")
    for (base, lo) in ((48, 16), (52, 18), (56, 20)):
        A(f"s_mov_b32 s{base}, s{lo}\ns_mov_b32 s{base+1}, s{lo+1}\ns_mov_b32 s{base+2}, {640*3072}\ns_mov_b32 s{base+3}, 0x20000")
    A(f"s_mul_i32 s35, s32, {64*3072}\ns_lshl_b32 s36, s31, 7\ns_add_u32 s35, s35, s36\ns_mul_i32 s36, s33, {16*3072}\ns_add_u32 s35, s35, s36")
    A(f"s_mul_i32 s37, s31, {64*1280}\ns_lshl_b32 s36, s32, 7\ns_add_u32 s37, s37, s36\ns_mul_i32 s36, s33, {16*1280}\ns_add_u32 s37, s37, s36")
    A("s_lshl_b32 s36, s33, 11")
    for i in range(2):
        A(f"s_add_u32 m0, s36, {L_WG + i*1024}\ns_nop 0\nbuffer_load_dwordx4 v8, s[48:51], s35 offen nt lds")
        A(f"s_add_u32 m0, s36, {L_WU + i*1024}\ns_nop 0\nbuffer_load_dwordx4 v8, s[52:55], s35 offen nt lds")
        A(f"s_add_u32 m0, s36, {L_WD + i*1024}\ns_nop 0\nbuffer_load_dwordx4 v9, s[56:59], s37 offen nt lds")
        if i == 0:
            A(f"s_add_u32 s35, s35, {8*3072}\ns_add_u32 s37, s37, {8*1280}")
    A("v_lshrrev_b32 v16, 4, v1\nv_and_b32 v17, 15, v1\nv_bfe_u32 v18, v1, 2, 2\nv_and_b32 v19, 3, v1")
    A("v_lshl_add_u32 v20, v16, 3, v18")
    A("v_lshlrev_b32 v21, 7, v20\nv_lshl_add_u32 v21, v19, 3, v21")
    A("v_mul_u32_u24 v22, 160, v20\nv_lshl_add_u32 v22, v19, 3, v22")
    A("v_lshl_add_u32 v23, v16, 2, v18\nv_lshlrev_b32 v23, 7, v23\nv_lshl_add_u32 v23, v19, 3, v23")
    A(f"v_mul_u32_u24 v24, 1280, v18\nv_add_u32 v24, {L_XN}, v24")
    A(f"s_mov_b32 s60, 0xffff0000\ns_mov_b32 s61, 0x3acccccd\ns_mov_b32 s62, 0x3727c5ac\ns_mov_b32 s63, {LOG2E}")
    stamp(1)
    A("s_waitcnt vmcnt(20)")
    stamp(2)
    f = 30
    A(f"v_add_u32 v{VT}, 1, v{VT}")
    for k in range(5):
        A(f"v_lshlrev_b32 v{f+2*k}, 16, v{VX+k}\nv_and_b32 v{f+2*k+1}, s60, v{VX+k}")
    A(f"v_mov_b32 v{VT+1}, v{VT}")
    A(f"v_add_f32 v40, v{f}, v{f+1}\nv_add_f32 v41, v{f+2}, v{f+3}\nv_add_f32 v42, v{f+4}, v{f+5}\nv_add_f32 v43, v{f+6}, v{f+7}\nv_add_f32 v44, v{f+8}, v{f+9}")
    A("v_add_f32 v40, v40, v41\nv_add_f32 v42, v42, v43\nv_add_f32 v40, v40, v44\nv_add_f32 v40, v40, v42")
    allsum64(40, 41)
    A("v_mul_f32 v40, s61, v40")
    for k in range(10):
        A(f"v_sub_f32 v{42+k}, v{f+k}, v40")
    A("v_mul_f32 v52, v42, v42\nv_mul_f32 v53, v43, v43")
    for k in range(2, 10):
        A(f"v_fmac_f32 v{52+(k&1)}, v{42+k}, v{42+k}")
    A("v_add_f32 v52, v52, v53")
    allsum64(52, 53)
    A("v_mul_f32 v52, s61, v52")
    A("v_cvt_pk_bf16_f32 v40, v40, v52\nv_and_b32 v52, s60, v40\nv_lshlrev_b32 v40, 16, v40")
    A("v_add_f32 v52, s62, v52\nv_cvt_pk_bf16_f32 v52, v52, v52\nv_and_b32 v52, s60, v52\nv_sqrt_f32 v52, v52")
    for k in range(10):
        A(f"v_sub_f32 v{f+k}, v{f+k}, v40")
    A("v_cvt_pk_bf16_f32 v52, v52, v52\nv_and_b32 v52, s60, v52\nv_rcp_f32 v53, v52")
    for k in range(5):
        A(f"v_cvt_pk_bf16_f32 v{42+k}, v{f+2*k}, v{f+2*k+1}")
    for k in range(5):
        A(f"v_lshlrev_b32 v{f+2*k}, 16, v{42+k}\nv_and_b32 v{f+2*k+1}, s60, v{42+k}")
    for k in range(10):
        A(f"v_mul_f32 v{42+k}, v{f+k}, v53")
    for k in range(10):
        A(f"v_fma_f32 v{f+k}, -v{42+k}, v52, v{f+k}")
    for k in range(10):
        A(f"v_fmac_f32 v{42+k}, v{f+k}, v53")
    A(f"v_add_u32 v6, {L_XN}, v6")
    for k in range(5):
        A(f"v_cvt_pk_bf16_f32 v{f+k}, v{42+2*k}, v{42+2*k+1}")
    for k in range(5):
        A(f"ds_write_b32 v6, v{f+k} offset:{k*256}")
    A("s_mul_i32 s34, s29, 160\nv_lshl_add_u32 v25, v16, 4, v24\nv_add_u32 v26, s34, v25")
    A("v_lshl_add_u32 v27, v16, 3, v24\nv_add_u32 v27, s34, v27")
    for t in range(3):
        A(f"s_mul_i32 s35, s33, 3\ns_add_u32 s35, s35, {t}\ns_lshr_b32 s36, s35, 2\ns_mul_i32 s36, s36, 10240\ns_and_b32 s35, s35, 3\ns_lshl_b32 s35, s35, 5\ns_add_u32 s35, s35, s36")
        A(f"v_add_u32 v{40+t}, s35, v21\nv_add_u32 v{43+t}, s35, v23")
    A(f"s_lshl_b32 s35, s28, 2\ns_add_u32 s35, s35, s33\ns_lshl_b32 s35, s35, 13\ns_add_u32 s35, s35, {WS_QX}")
    A("s_lshl_b32 s36, s29, 10\ns_add_u32 s36, s36, s35\nv_lshl_add_u32 v46, v1, 4, s36")
    A("s_lshl_b32 s36, s30, 8\ns_add_u32 s36, s36, s35\ns_add_u32 s36, s36, 2048")
    A("v_lshlrev_b32 v47, 10, v16\nv_lshl_add_u32 v47, v17, 4, v47\nv_add_u32 v47, s36, v47")
    stamp(3)
    A("s_waitcnt vmcnt(14) lgkmcnt(0)\ns_barrier")
    stamp(4)
    A("ds_read_b128 v[48:51], v26\nds_read_b128 v[52:55], v26 offset:64\nds_read_b64 v[56:57], v27 offset:128")
    for t in range(3):
        r = 60 + 10 * t
        A(f"ds_read_b64_tr_b16 v[{r}:{r+1}], v{40+t} offset:{L_WQ}\nds_read_b64_tr_b16 v[{r+2}:{r+3}], v{40+t} offset:{L_WQ+512}")
    for t in range(3):
        r = 60 + 10 * t
        A(f"ds_read_b64_tr_b16 v[{r+4}:{r+5}], v{40+t} offset:{L_WQ+4096}\nds_read_b64_tr_b16 v[{r+6}:{r+7}], v{40+t} offset:{L_WQ+4608}")
    A("s_waitcnt lgkmcnt(6)")
    for t in range(3):
        r = 60 + 10 * t
        A(f"v_mfma_f32_16x16x32_bf16 v[{92+4*t}:{95+4*t}], v[48:51], v[{r}:{r+3}], 0")
        A(f"ds_read_b64_tr_b16 v[{r+8}:{r+9}], v{43+t} offset:{L_WQ+8192}")
    A("s_waitcnt lgkmcnt(3)")
    for t in range(3):
        r = 60 + 10 * t
        A(f"v_mfma_f32_16x16x32_bf16 v[{92+4*t}:{95+4*t}], v[52:55], v[{r+4}:{r+7}], v[{92+4*t}:{95+4*t}]")
    A("s_waitcnt lgkmcnt(0)\ns_nop 3")
    for t in range(3):
        r = 60 + 10 * t
        A(f"v_mfma_f32_16x16x16_bf16 v[{92+4*t}:{95+4*t}], v[56:57], v[{r+8}:{r+9}], v[{92+4*t}:{95+4*t}]")
    A(f"v_mov_b32 v107, v{VT}\ns_nop 5")
    A("v_mov_b32 v104, v92\nv_mov_b32 v105, v96\nv_mov_b32 v106, v100")
    A("global_store_dwordx4 v46, v[104:107], s[26:27] sc1")
    stamp(5)
    gather([f"global_load_dwordx4 v[60:63], v47, s[26:27] offset:-2048 sc1",
            f"global_load_dwordx4 v[64:67], v47, s[26:27] offset:2048 sc1"],
           [(32, 63), (32, 67)], 64, after_issue=lambda: A("s_barrier"))
    stamp(6)
    A("v_add_f32 v60, v60, v64\nv_add_f32 v61, v61, v65\nv_add_f32 v62, v62, v66\nv_add_f32 v63, v62, 0")
    A("s_mul_i32 s35, s33, 96")
    A("v_permlane16_swap_b32 v60, v61\nv_permlane16_swap_b32 v62, v63")
    A(f"v_add_f32 v60, v60, v61\nv_add_f32 v62, v62, v63\ns_add_u32 s35, s35, {L_Q}\nv_lshl_add_u32 v64, v1, 1, s35")
    A("v_permlane32_swap_b32 v60, v62\nv_add_f32 v60, v60, v62\nv_cvt_pk_bf16_f32 v60, v60, v60")
    A("s_mov_b32 s38, -1\ns_mov_b32 s39, 0xffff\ns_mov_b64 exec, s[38:39]\nds_write_b16 v64, v60\ns_mov_b64 exec, -1")
    A("s_waitcnt lgkmcnt(0)\ns_barrier")
    stamp(7)
    A(f"s_lshl_b32 s35, s32, 2\ns_add_u32 s35, s35, s33\ns_mul_i32 s35, s35, {4*3072}\ns_lshl_b32 s36, s31, 7\ns_add_u32 s35, s35, s36\ns_add_u32 s35, s35, {WS_FX2}")
    A("v_mul_u32_u24 v30, 3072, v16\nv_lshl_add_u32 v30, v17, 3, v30\nv_add_u32 v30, s35, v30")
    A(f"s_mul_i32 s35, s29, 5\ns_lshl_b32 s35, s35, 14\ns_lshl_b32 s36, s28, 7\ns_add_u32 s35, s35, s36\ns_add_u32 s35, s35, {WS_YX}")
    A("v_lshlrev_b32 v31, 12, v16\nv_lshl_add_u32 v31, v17, 3, v31\nv_add_u32 v31, s35, v31\nv_add_u32 v32, 0x10000, v31")
    A("s_lshl_b32 s36, s33, 14\nv_add_u32 v31, s36, v31")
    A(f"s_mul_i32 s35, s28, {8*OX_STRIDE}\ns_add_u32 s35, s35, {WS_OX}\ns_mul_i32 s36, s29, {OX_STRIDE}\ns_add_u32 s36, s36, s35")
    A("v_lshl_add_u32 v33, v1, 4, s36")
    A(f"s_mul_i32 s36, s33, {2*OX_STRIDE}\ns_add_u32 s36, s36, s35\nv_lshl_add_u32 v34, v1, 4, s36\nv_mov_b32 v35, s36")
    if inval:
        A(f"v_xor_b32 v107, -1, v{VT}\nv_mov_b32 v106, v107")
        A("global_store_dwordx2 v31, v[106:107], s[26:27] sc1")
        A("s_cmp_ge_u32 s2, 240\ns_cbranch_scc1 L_inv1\nglobal_store_dwordx2 v30, v[106:107], s[26:27] sc1\nL_inv1:")
        A("s_cmp_lg_u32 s33, 0\ns_cbranch_scc1 L_inv2")
        A("global_store_dwordx2 v32, v[106:107], s[26:27] sc1\nglobal_store_dwordx4 v33, v[104:107], s[26:27] sc1")
        A("s_mov_b64 exec, 1\nglobal_store_dwordx4 v33, v[104:107], s[26:27] offset:1024 sc1\ns_mov_b64 exec, -1")
        A("L_inv2:")
    A(f"s_lshl_b32 s35, s33, 5\nv_add_u32 v36, s35, v22")
    for s in range(6):
        A(f"ds_read_b64_tr_b16 v[{112+4*s}:{113+4*s}], v36 offset:{L_WO+s*5120}\nds_read_b64_tr_b16 v[{114+4*s}:{115+4*s}], v36 offset:{L_WO+s*5120+640}")
    A("s_waitcnt lgkmcnt(0)")
    for s in range(6):
        A(f"ds_read_b64_tr_b16 v[{136+4*s}:{137+4*s}], v22 offset:{L_WO+128+s*5120}\nds_read_b64_tr_b16 v[{138+4*s}:{139+4*s}], v22 offset:{L_WO+128+s*5120+640}")
    A(f"v_add_u32 v36, s35, v21\nv_add_u32 v36, {L_WG}, v36")
    A("s_waitcnt lgkmcnt(0)")
    A("s_cmp_ge_u32 s2, 240\ns_cbranch_scc1 L_noffn1")
    A("s_lshl_b32 s35, s32, 7\nv_add_u32 v37, s35, v25")
    A("ds_read_b128 v[48:51], v37\nds_read_b128 v[52:55], v37 offset:64")
    for m in range(2):
        for s in range(2):
            r = 60 + 8 * m + 4 * s
            A(f"ds_read_b64_tr_b16 v[{r}:{r+1}], v36 offset:{m*8192+s*4096}\nds_read_b64_tr_b16 v[{r+2}:{r+3}], v36 offset:{m*8192+s*4096+512}")
    A(f"s_lshl_b32 s35, s31, 2\ns_add_u32 s35, s35, s33\ns_mul_i32 s35, s35, 10240\ns_add_u32 s35, s35, {WS_FX1}")
    A("s_lshl_b32 s36, s32, 10\ns_add_u32 s36, s36, s35\nv_lshl_add_u32 v38, v1, 4, s36")
    A("s_add_u32 s35, s35, 4096\nv_lshl_add_u32 v39, v1, 4, s35\nv_add_u32 v40, 4096, v39")
    A("s_waitcnt lgkmcnt(0)")
    A("v_mfma_f32_16x16x32_bf16 v[92:95], v[48:51], v[60:63], 0\nv_mfma_f32_16x16x32_bf16 v[96:99], v[48:51], v[68:71], 0")
    A("v_mfma_f32_16x16x32_bf16 v[92:95], v[52:55], v[64:67], v[92:95]\nv_mfma_f32_16x16x32_bf16 v[96:99], v[52:55], v[72:75], v[96:99]")
    A(f"v_mov_b32 v106, v{VT}\nv_mov_b32 v107, v{VT}\ns_nop 5\nv_mov_b32 v104, v92\nv_mov_b32 v105, v96")
    A("global_store_dwordx4 v38, v[104:107], s[26:27] sc1")
    lds, chk = [], []
    for i in range(10):
        r = 48 + 4 * i
        lds.append(f"global_load_dwordx4 v[{r}:{r+3}], v{39 if i < 8 else 40}, s[26:27] offset:{(i*1024-4096) if i < 8 else (i-8)*1024} sc1")
        chk.append((64, r + 2))
    gather(lds, chk, 64)
    for c in range(2):
        for i in range(5):
            A(f"v_add_f32 v{48+8*i+c}, v{48+8*i+c}, v{52+8*i+c}")
        A(f"v_add_f32 v{48+c}, v{48+c}, v{56+c}\nv_add_f32 v{64+c}, v{64+c}, v{72+c}\nv_add_f32 v{48+c}, v{48+c}, v{64+c}\nv_add_f32 v{48+c}, v{48+c}, v{80+c}")
    A("v_cvt_pk_bf16_f32 v48, v48, v49\nv_and_b32 v49, s60, v48\nv_lshlrev_b32 v48, 16, v48\nv_max_f32 v48, 0, v48\nv_mul_f32 v48, v48, v49\nv_cvt_pk_bf16_f32 v48, v48, v48")
    A(f"s_lshl_b32 s35, s33, 5\ns_add_u32 s35, s35, {L_HB}\nv_lshlrev_b32 v49, 7, v16\nv_lshl_add_u32 v49, v17, 1, v49\nv_add_u32 v49, s35, v49")
    A("ds_write_b16 v49, v48")
    A("L_noffn1:")
    stamp(8)
    A("s_waitcnt lgkmcnt(0)\ns_barrier")
    A(f"v_mov_b32 v38, {L_MX}\nds_read_b128 v[44:47], v38")
    A("s_cmp_ge_u32 s2, 240\ns_cbranch_scc1 L_noffn2")
    A(f"v_lshlrev_b32 v37, 7, v18\nv_lshl_add_u32 v37, v16, 4, v37\nv_add_u32 v37, {L_HB}, v37")
    A("ds_read_b128 v[48:51], v37\nds_read_b128 v[52:55], v37 offset:64")
    for s in range(2):
        r = 60 + 4 * s
        A(f"ds_read_b64_tr_b16 v[{r}:{r+1}], v36 offset:{16384+s*4096}\nds_read_b64_tr_b16 v[{r+2}:{r+3}], v36 offset:{16384+s*4096+512}")
    A("s_waitcnt lgkmcnt(0)")
    A("v_mfma_f32_16x16x32_bf16 v[92:95], v[48:51], v[60:63], 0\nv_mfma_f32_16x16x32_bf16 v[92:95], v[52:55], v[64:67], v[92:95]")
    A(f"s_nop 7\nv_mov_b32 v93, v{VT}")
    A("global_store_dwordx2 v30, v[92:93], s[26:27] sc1")
    A("L_noffn2:")
    A("s_waitcnt lgkmcnt(0)")
    A("v_max3_f32 v44, v44, v45, v46\nv_max_f32 v44, v44, v47")
    A("s_cmp_lg_u32 s33, 3\ns_cbranch_scc1 L_nofin1\ns_cmp_ge_u32 s2, 160\ns_cbranch_scc1 L_nofin1")
    A(f"s_mul_i32 s35, s2, 3072\ns_add_u32 s35, s35, {WS_FX2}\nv_lshl_add_u32 v39, v1, 3, s35")
    A(f"s_lshl_b32 s35, s2, 12\ns_add_u32 s35, s35, {WS_YX}\nv_lshl_add_u32 v40, v1, 3, s35")
    A("s_and_b32 s35, s2, 3\ns_mul_i32 s35, s35, 1280\ns_lshr_b32 s36, s2, 2\ns_lshl_b32 s36, s36, 5\ns_add_u32 s35, s35, s36\nv_lshl_add_u32 v41, v17, 1, s35")
    A("global_load_ushort v43, v41, s[4:5]")
    gather([f"global_load_dwordx2 v[{48+2*i}:{49+2*i}], v39, s[26:27] offset:{i*512} sc1" for i in range(6)],
           [(32, 49 + 2 * i) for i in range(6)], 64)
    A("v_add_f32 v48, v48, v50\nv_add_f32 v52, v52, v54\nv_add_f32 v56, v56, v58\nv_add_f32 v48, v48, v52\nv_add_f32 v48, v48, v56")
    rowsum(48, 49)
    A("v_cvt_pk_bf16_f32 v48, v48, v48\nv_and_b32 v48, s60, v48\nv_mul_f32 v49, s63, v48\nv_exp_f32 v49, -v49\nv_lshlrev_b32 v43, 16, v43")
    A("v_add_f32 v49, 1.0, v49\nv_rcp_f32 v50, v49\ns_nop 0\nv_mul_f32 v42, v48, v50")
    A("v_cvt_pk_bf16_f32 v42, v42, v42\nv_and_b32 v42, s60, v42")
    A("L_nofin1:")
    A(f"v_lshlrev_b32 v36, 2, v1\nv_add_u32 v36, {L_RD}, v36")
    A(f"s_mul_i32 s35, s33, 384\ns_add_u32 s35, s35, {L_OB}\nv_lshl_add_u32 v37, v1, 1, s35")
    A(f"v_mul_u32_u24 v39, 384, v18\nv_lshl_add_u32 v39, v16, 4, v39\nv_add_u32 v39, {L_OB}, v39")
    stamp(9)
    A("s_barrier")
    stamp(10)
    A("s_cmp_lg_u32 s33, 0\ns_cbranch_scc1 L_nored")
    for i in range(12):
        A(f"ds_read2st64_b32 v[{48+2*i}:{49+2*i}], v36 offset0:{2*i} offset1:{2*i+1}")
    A("ds_read_b128 v[72:75], v38 offset:16")
    A("s_waitcnt lgkmcnt(7)")
    for k in range(3):
        A(f"v_add_f32 v{48+k}, v{48+k}, v{51+k}\nv_add_f32 v{54+k}, v{54+k}, v{57+k}")
    A("s_waitcnt lgkmcnt(1)")
    for k in range(3):
        A(f"v_add_f32 v{60+k}, v{60+k}, v{63+k}\nv_add_f32 v{66+k}, v{66+k}, v{69+k}")
    for k in range(3):
        A(f"v_add_f32 v{48+k}, v{48+k}, v{54+k}\nv_add_f32 v{60+k}, v{60+k}, v{66+k}")
    A(f"v_mov_b32 v51, v{VT}")
    for k in range(3):
        A(f"v_add_f32 v{48+k}, v{48+k}, v{60+k}")
    A("global_store_dwordx4 v33, v[48:51], s[26:27] sc1")
    A("s_waitcnt lgkmcnt(0)")
    A(f"v_add_f32 v72, v72, v73\nv_add_f32 v74, v74, v75\nv_add_f32 v45, v72, v74\nv_mov_b32 v46, v{VT}\nv_mov_b32 v47, v{VT}")
    A("s_mov_b64 exec, 1\nglobal_store_dwordx4 v33, v[44:47], s[26:27] offset:1024 sc1\ns_mov_b64 exec, -1")
    A("L_nored:")
    stamp(11)
    gather([f"global_load_dwordx4 v[52:55], v34, s[26:27] sc1",
            f"global_load_dwordx4 v[56:59], v34, s[26:27] offset:{OX_STRIDE} sc1",
            f"global_load_dwordx4 v[60:63], v35, s[26:27] offset:1024 sc1",
            f"global_load_dwordx4 v[64:67], v35, s[26:27] offset:{OX_STRIDE+1024} sc1"],
           [(32, 55), (32, 59), (64, 62), (64, 66)], 64)
    stamp(12)
    A("v_max_f32 v68, v60, v64\nv_sub_f32 v60, v60, v68\nv_sub_f32 v64, v64, v68\nv_mul_f32 v60, s63, v60\nv_mul_f32 v64, s63, v64")
    A("v_exp_f32 v60, v60\nv_exp_f32 v64, v64\ns_nop 0\nv_mul_f32 v61, v61, v60\nv_fmac_f32 v61, v65, v64\nv_rcp_f32 v61, v61\ns_nop 0")
    A("v_mul_f32 v60, v60, v61\nv_mul_f32 v64, v64, v61")
    for k in range(3):
        A(f"v_mul_f32 v{52+k}, v{52+k}, v60")
    for k in range(3):
        A(f"v_fmac_f32 v{52+k}, v{56+k}, v64")
    A("v_cvt_pk_bf16_f32 v52, v52, v53\nv_cvt_pk_bf16_f32 v54, v54, v54")
    A("ds_write_b16 v37, v52\nds_write_b16_d16_hi v37, v52 offset:128\nds_write_b16 v37, v54 offset:256")
    A("s_waitcnt lgkmcnt(0)\ns_barrier")
    for s in range(6):
        A(f"ds_read_b128 v[{48+4*s}:{51+4*s}], v39 offset:{s*64}")
    for s in range(6):
        A(f"s_waitcnt lgkmcnt({5-s})")
        c0 = "0" if s == 0 else "v[92:95]"
        c1 = "0" if s == 0 else "v[96:99]"
        A(f"v_mfma_f32_16x16x32_bf16 v[92:95], v[{48+4*s}:{51+4*s}], v[{112+4*s}:{115+4*s}], {c0}")
        A(f"v_mfma_f32_16x16x32_bf16 v[96:99], v[{48+4*s}:{51+4*s}], v[{136+4*s}:{139+4*s}], {c1}")
    A(f"s_nop 6\nv_mov_b32 v93, v{VT}\nv_mov_b32 v97, v{VT}")
    A("global_store_dwordx2 v31, v[92:93], s[26:27] sc1")
    A("s_cmp_lg_u32 s33, 0\ns_cbranch_scc1 L_not4\nglobal_store_dwordx2 v32, v[96:97], s[26:27] sc1\nL_not4:")
    stamp(13)
    A("s_cmp_lg_u32 s33, 3\ns_cbranch_scc1 L_fini\ns_cmp_ge_u32 s2, 160\ns_cbranch_scc1 L_fini")
    gather([f"global_load_dwordx2 v[{48+2*i}:{49+2*i}], v40, s[26:27] offset:{i*512} sc1" for i in range(8)],
           [(32, 49 + 2 * i) for i in range(8)], 64)
    stamp(14)
    A("v_add_f32 v48, v48, v50\nv_add_f32 v52, v52, v54\nv_add_f32 v56, v56, v58\nv_add_f32 v60, v60, v62")
    A("v_add_f32 v48, v48, v52\nv_add_f32 v56, v56, v60\nv_add_f32 v48, v48, v56")
    rowsum(48, 49)
    A("v_cvt_pk_bf16_f32 v48, v48, v48\nv_and_b32 v48, s60, v48\nv_mul_f32 v48, v48, v42\nv_cvt_pk_bf16_f32 v48, v48, v48\nv_and_b32 v48, s60, v48")
    A("v_add_f32 v48, v48, v43\nv_cvt_pk_bf16_f32 v48, v48, v48")
    A("s_mov_b64 exec, 0xffff\nglobal_store_short v41, v48, s[22:23]")
    A(f"s_cmp_lg_u32 s2, 0\ns_cbranch_scc1 L_fini\ns_mov_b64 exec, 1\nglobal_store_dword v7, v{VT}, s[26:27] sc1")
    A("L_fini:")
    if stamps:
        A("s_mov_b64 exec, -1")
        stamp(15)
        A("L_stampout:")
        A("s_waitcnt lgkmcnt(0)\nv_writelane_b32 v255, s98, 0")
        A("s_getreg_b32 s96, hwreg(HW_REG_XCC_ID)\nv_writelane_b32 v255, s96, 16")
        A(f"s_lshl_b32 s96, s2, 3\ns_add_u32 s96, s96, s3\ns_lshl_b32 s96, s96, 8\ns_add_u32 s96, s96, {WS_STAMP}\nv_lshl_add_u32 v254, v1, 2, s96")
        A("global_store_dword v254, v255, s[26:27]")
    A("L_end:")
    A("s_endpgm")

    out = HEADER + f"; @launch grid=(256,1,1) block=(512,1,1) lds={L_END}\n"
    out += '.amdgcn_target "amdgcn-amd-amdhsa--gfx950"\n.text\n'
    out += f".globl {NAME}_kernel\n.p2align 8\n.type {NAME}_kernel,@function\n"
    out += A.text()
    nv = 256 if stamps else 160
    out += f""".section .rodata,"a"
.p2align 6
.amdhsa_kernel {NAME}_kernel
  .amdhsa_next_free_vgpr {nv}
  .amdhsa_next_free_sgpr 102
  .amdhsa_accum_offset {nv}
  .amdhsa_group_segment_fixed_size 0
  .amdhsa_kernarg_size 96
  .amdhsa_user_sgpr_count 2
  .amdhsa_user_sgpr_kernarg_segment_ptr 1
  .amdhsa_system_sgpr_workgroup_id_x 1
  .amdhsa_float_denorm_mode_32 3
.end_amdhsa_kernel
"""
    return out


if __name__ == "__main__":
    kw = eval("dict(%s)" % (sys.argv[2] if len(sys.argv) > 2 else ""))
    open(sys.argv[1], "w").write(gen(**kw))
```

```python
import sys

NAME = "recurrent_scan__gqa_block_cached__glu_gated_reglu__decode"

HEADER = """; Kernarg layout for this problem (96 bytes, ptrs only, base s[0:1]):
"""

WS_E = 0
WS_QX = 0x001000
WS_FX1 = 0x110000
WS_FX2 = 0x210000
WS_OX = 0x290000
OX_STRIDE = 1088
WS_YX = 0x2e0000
WS_HX = 0x380000
WS_STAMP = 0x400000

L_WQ = 0
L_WO = 30720
L_WG = 61440
L_WU = 69632
L_WD = 77824
L_XN = 86016
L_Q = 91136
L_SC = 91648
L_MX = 99840
L_LS = 99856
L_HB = 99904
L_RD = 100416
L_OB = 106560
L_CNT = 108096
L_END = 108160

CHUNK = 786432
KV_BYTES = 201326592
LOG2E = 0x3fb8aa3b
SCALE = 0x3d93cd3a


class Gen:
    def __init__(self):
        self.L = []
        self.uid = 0

    def __call__(self, s):
        for line in s.split("\n"):
            line = line.strip()
            if line:
                self.L.append(line if line.endswith(":") else "  " + line)

    def label(self, base):
        self.uid += 1
        return f"L_{base}_{self.uid}"

    def text(self):
        return "\n".join(self.L) + "\n"


def gen(rot=1, mapping="xcd", xk=1, xv=0, sleep=1, stamps=False, inval=False, spin=20000, pw=8, early=True, ack=True, slow=16, Wk=(5,), Wv=(5,), Wt=None, nt=0, pairint=False, noffn=False, abl=(), hs=None, qsleep=0, qpol='sc1'):
    A = Gen()
    inhelper = [False]

    def stamp(i):
        if stamps and not (inhelper[0] and hs is not None and i not in hs):
            A(f"s_memrealtime s[96:97]\ns_waitcnt lgkmcnt(0)\nv_writelane_b32 v255, s96, {i}")

    def allsum64(v, t, op="v_add_f32"):
        dpp = op + "_dpp"
        A("s_nop 1")
        A(f"{dpp} v{v}, v{v}, v{v} quad_perm:[1,0,3,2] row_mask:0xf bank_mask:0xf\ns_nop 1")
        A(f"{dpp} v{v}, v{v}, v{v} quad_perm:[2,3,0,1] row_mask:0xf bank_mask:0xf\ns_nop 1")
        A(f"{dpp} v{v}, v{v}, v{v} row_half_mirror row_mask:0xf bank_mask:0xf\ns_nop 1")
        A(f"{dpp} v{v}, v{v}, v{v} row_mirror row_mask:0xf bank_mask:0xf")
        rowsum(v, t, op)

    def rowsum(v, t, op="v_add_f32"):
        A(f"v_mov_b32 v{t}, v{v}\ns_nop 1\nv_permlane16_swap_b32 v{v}, v{t}\n{op} v{v}, v{v}, v{t}")
        A(f"v_mov_b32 v{t}, v{v}\ns_nop 1\nv_permlane32_swap_b32 v{v}, v{t}\n{op} v{v}, v{v}, v{t}")

    def gather(loads, checks, sbase, after_issue=None, sleep=sleep):
        for ld in loads:
            A(ld)
        if after_issue:
            after_issue()
        top = A.label("poll")
        done = A.label("got")
        cnt = sbase + 2 * len(loads) + 2
        A(f"s_mov_b32 s{cnt}, {spin}")
        A(f"{top}:")
        A("s_waitcnt vmcnt(0)")
        n = len(loads)
        for i, (kind, r) in enumerate(checks):
            m = sbase + 2 * i
            if kind == 64:
                A(f"v_cmp_ne_u64 s[{m}:{m+1}], v[{r}:{r+1}], v[{VT}:{VT+1}]")
            else:
                A(f"v_cmp_ne_u32 s[{m}:{m+1}], v{r}, v{VT}")
        acc = sbase + 2 * n
        o2 = sbase + 2 if n > 1 else sbase
        A(f"s_or_b64 s[{acc}:{acc+1}], s[{sbase}:{sbase+1}], s[{o2}:{o2+1}]")
        for i in range(2, n):
            m = sbase + 2 * i
            A(f"s_or_b64 s[{acc}:{acc+1}], s[{acc}:{acc+1}], s[{m}:{m+1}]")
        A(f"s_cbranch_scc0 {done}")
        A(f"s_sub_u32 s{cnt}, s{cnt}, 1\ns_cbranch_scc1 {done}")
        if sleep:
            A(f"s_sleep {sleep}")
        for i, ld in enumerate(loads):
            m = sbase + 2 * i
            A(f"s_wqm_b64 exec, s[{m}:{m+1}]")
            A(ld)
        A("s_mov_b64 exec, -1")
        A(f"s_branch {top}")
        A(f"{done}:")

    def ffn_unit(scb, srs, tmp):
        A(f"s_min_u32 s{srs}, s2, 239\ns_mul_i32 s{scb}, s{srs}, 205\ns_lshr_b32 s{scb}, s{scb}, 11\ns_mul_i32 s{tmp}, s{scb}, 10\ns_sub_u32 s{srs}, s{srs}, s{tmp}")

    A(f"{NAME}_kernel:")
    A("s_load_dwordx16 s[4:19], s[0:1], 0")
    A("s_load_dwordx8 s[20:27], s[0:1], 64")
    A("s_cmp_ge_u32 s2, 256\ns_cbranch_scc1 L_end")
    if stamps:
        A("s_memrealtime s[98:99]")
    A("v_lshrrev_b32 v2, 6, v0\nv_and_b32 v1, 63, v0")
    if mapping == "xcd":
        A("s_and_b32 s28, s2, 7\ns_lshl_b32 s28, s28, 2\ns_lshr_b32 s29, s2, 6\ns_add_u32 s28, s28, s29")
        A("s_bfe_u32 s29, s2, 0x30003")
    elif mapping == "p2":
        A("s_bfe_u32 s28, s2, 0x50001\ns_lshr_b32 s29, s2, 6\ns_lshl_b32 s29, s29, 1\ns_and_b32 s30, s2, 1\ns_add_u32 s29, s29, s30")
    elif mapping == "lin":
        A("s_lshr_b32 s28, s2, 3\ns_and_b32 s29, s2, 7")
    A("v_readfirstlane_b32 s3, v2")
    A("s_lshr_b32 s30, s29, 1")
    A("v_lshrrev_b32 v2, 3, v1\nv_and_b32 v3, 7, v1")
    if stamps:
        A("v_mov_b32 v255, 0")
    A("s_cmp_ge_u32 s3, 4\ns_cbranch_scc1 L_helper")

    VO = [4, 5, 6, 7]
    VS = 8
    VM = 12
    VQ = 16
    VA = 28
    VSEL = 40
    VP = 44
    VSC = 48
    VTMP = 52
    VB = 64
    A("s_lshl_b32 s31, s30, 5\ns_add_u32 s31, s31, s28\ns_lshl_b32 s31, s31, 1\ns_and_b32 s32, s29, 1\ns_add_u32 s31, s31, s32")
    if pairint:
        STEP, SPAN = 98304, 2 * CHUNK
        A(f"s_and_b32 s33, s31, 1\ns_lshr_b32 s31, s31, 1\ns_mul_i32 s32, s31, {SPAN}\ns_mul_i32 s33, s33, 49152\ns_add_u32 s32, s32, s33")
    else:
        STEP, SPAN = 49152, CHUNK
        A(f"s_mul_i32 s32, s31, {CHUNK}")
    A(f"s_mul_i32 s33, s3, 12288\ns_add_u32 s32, s32, s33")
    A(f"v_mul_u32_u24 v4, 384, v2\nv_lshl_add_u32 v4, v3, 4, v4\nv_add_u32 v4, s32, v4")
    A("v_add_u32 v5, 3072, v4\nv_add_u32 v6, 6144, v4\nv_add_u32 v7, 9216, v4")
    A(f"s_mul_i32 s34, s31, {rot}\ns_and_b32 s34, s34, 15\ns_mul_i32 s34, s34, {STEP}")
    A(f"s_mov_b32 s38, {KV_BYTES}\ns_mov_b32 s39, 0x20000\ns_mov_b32 s42, {KV_BYTES}\ns_mov_b32 s43, 0x20000")
    A("s_waitcnt lgkmcnt(0)")
    A("s_mov_b32 s36, s6\ns_mov_b32 s37, s7\ns_mov_b32 s40, s6\ns_mov_b32 s41, s7")

    def ld(u, srd, soff):
        gi, jj = divmod(u, 3)
        r = VB + u * 4
        A(f"buffer_load_dwordx4 v[{r}:{r+3}], v{VO[gi]}, s[{srd}:{srd+3}], {soff} offen offset:{jj*128} nt")

    A("v_mul_u32_u24 v8, 205, v1\nv_lshrrev_b32 v8, 11, v8\nv_mul_u32_u24 v9, 10, v8\nv_sub_u32 v9, v1, v9")
    A("v_mul_u32_u24 v8, 1280, v8\nv_lshl_add_u32 v8, v9, 4, v8")
    A(f"s_mov_b32 s44, s12\ns_mov_b32 s45, s13\ns_mov_b32 s46, {6144*1280}\ns_mov_b32 s47, 0x20000")
    A(f"s_mul_i32 s60, s28, {192*1280}\ns_mul_i32 s61, s29, 160\ns_add_u32 s60, s60, s61\ns_mul_i32 s61, s3, {48*1280}\ns_add_u32 s60, s60, s61")
    A(f"s_mul_i32 s61, s3, 7680")
    A("s_mov_b32 s62, -1\ns_mov_b32 s63, 0x0fffffff")
    A("s_barrier")
    issued = [0]

    def pace():
        issued[0] += 1
        if issued[0] > pw:
            A(f"s_waitcnt vmcnt({pw-1})")

    A("s_mov_b64 exec, s[62:63]")
    for i in range(8):
        A(f"s_add_u32 m0, s61, {L_WO + i*960}")
        A(f"s_add_u32 s60, s60, {6*1280}" if i else "s_nop 0")
        pace()
        A(f"buffer_load_dwordx4 v8, s[44:47], s60 offen nt lds")
    A("s_mov_b64 exec, -1")
    ffn_unit(64, 65, 66)
    A("v_mul_u32_u24 v8, 3072, v2\nv_lshl_add_u32 v8, v3, 4, v8\nv_mul_u32_u24 v9, 1280, v2\nv_lshl_add_u32 v9, v3, 4, v9")
    for (base, lo) in ((48, 16), (52, 18), (56, 20)):
        A(f"s_mov_b32 s{base}, s{lo}\ns_mov_b32 s{base+1}, s{lo+1}\ns_mov_b32 s{base+2}, {640*3072}\ns_mov_b32 s{base+3}, 0x20000")
    A(f"s_mul_i32 s60, s65, {64*3072}\ns_lshl_b32 s61, s64, 7\ns_add_u32 s60, s60, s61\ns_mul_i32 s61, s3, {16*3072}\ns_add_u32 s60, s60, s61")
    A(f"s_mul_i32 s62, s64, {64*1280}\ns_lshl_b32 s61, s65, 7\ns_add_u32 s62, s62, s61\ns_mul_i32 s61, s3, {16*1280}\ns_add_u32 s62, s62, s61")
    A("s_lshl_b32 s61, s3, 11")
    A("s_cmp_ge_u32 s2, 240\ns_cbranch_scc1 L_noffnld")
    for i in range(2):
        for (lb, vr, srd, so) in ((L_WG, 8, 48, 60), (L_WU, 8, 52, 60), (L_WD, 9, 56, 62)):
            A(f"s_add_u32 m0, s61, {lb + i*1024}\ns_nop 0")
            pace()
            A(f"buffer_load_dwordx4 v{vr}, s[{srd}:{srd+3}], s{so} offen nt lds")
        if i == 0:
            A(f"s_add_u32 s60, s60, {8*3072}\ns_add_u32 s62, s62, {8*1280}")
    A("L_noffnld:")

    def sched(Wl):
        hi = [u + Wl[u % len(Wl)] for u in range(12)]
        for _ in range(2):
            for u in range(12):
                hi[u] = max(hi[u], hi[u - 1] - (12 if u == 0 else 0))
        assert all(hi[u] <= u + 11 for u in range(12))
        return hi

    hiK, hiV = sched(Wk), sched(Wv)
    nk0 = 12 if xk else hiK[11] - 11
    for u in range(nk0):
        pace()
        ld(u, 36, "s34")
    A(f"s_lshl_b32 s33, s3, 11\ns_add_u32 s33, s33, {L_SC}\nv_lshl_add_u32 v{VS}, v2, 4, s33")
    A(f"v_lshrrev_b32 v9, 1, v3\nv_and_b32 v10, 1, v3\nv_lshlrev_b32 v10, 4, v10\nv_mov_b32 v11, 0xffff\nv_lshlrev_b32 v10, v10, v11")
    for r in range(4):
        A(f"v_cmp_eq_u32 vcc, {r}, v9\ns_nop 1\nv_cndmask_b32 v{VM+r}, 0, v10, vcc")
    for r in range(12):
        A(f"v_mov_b32 v{VA+r}, 0")
    A(f"v_lshlrev_b32 v9, 4, v3\nv_add_u32 v9, {L_Q}, v9")
    A("s_mov_b32 s44, 0x01010101\ns_mov_b32 s45, 0x01010101")
    A(f"s_waitcnt vmcnt({min(nk0, pw)})")
    stamp(1)
    A("s_barrier")
    for jj in range(3):
        A(f"ds_read_b128 v[{VQ+4*jj}:{VQ+4*jj+3}], v9 offset:{jj*128}")
    stamp(2)
    A("s_mov_b32 s46, 0")
    A("s_waitcnt lgkmcnt(0)")

    def step_head(last_fix):
        A(f"s_add_u32 s35, s34, {STEP}\ns_cmp_ge_u32 s35, {SPAN}\ns_cselect_b32 s35, 0, s35")
        A("s_cmp_eq_u32 s46, 15")
        last_fix()

    def issue(cur, upto, x):
        while cur < upto:
            cur += 1
            if cur >= 12:
                ld(cur - 12, 40, "s35")
            elif cur < x:
                sk = A.label("skip")
                A(f"s_cmp_eq_u32 s46, 0\ns_cbranch_scc1 {sk}")
                ld(cur, 36, "s34")
                A(f"{sk}:")
            else:
                ld(cur, 36, "s34")
        return cur

    A("L_kloop:")
    step_head(lambda: A("s_cselect_b32 s40, s8, s6\ns_cselect_b32 s41, s9, s7"))
    cur = hiK[11] - 12
    for gi in range(4):
        t = VTMP
        for jj in range(3):
            u = 3 * gi + jj
            b = VB + 4 * u
            A(f"s_waitcnt vmcnt({cur-u})")
            if early:
                cur = issue(cur, hiK[u], nk0)
            for k in range(4):
                c = (k & 1)
                src = "0" if (jj == 0 and k < 2) else f"v{t+c}"
                A(f"v_dot2_f32_bf16 v{t+c}, v{b+k}, v{VQ+4*jj+k}, {src}")
            if not early:
                cur = issue(cur, hiK[u], nk0)
        A("s_nop 2")
        A(f"v_add_f32 v{t}, v{t}, v{t+1}")
        A(f"s_nop 1\nv_add_f32_dpp v{t}, v{t}, v{t} quad_perm:[1,0,3,2] row_mask:0xf bank_mask:0xf")
        A(f"s_nop 1\nv_add_f32_dpp v{t}, v{t}, v{t} quad_perm:[2,3,0,1] row_mask:0xf bank_mask:0xf")
        A(f"s_nop 1\nv_add_f32_dpp v{VSC+gi}, v{t}, v{t} row_half_mirror row_mask:0xf bank_mask:0xf")
    A(f"s_mov_b64 exec, s[44:45]\nds_write_b128 v{VS}, v[{VSC}:{VSC+3}]\ns_mov_b64 exec, -1")
    A(f"v_add_u32 v{VS}, 128, v{VS}")
    A("s_mov_b32 s34, s35\ns_add_u32 s46, s46, 1\ns_cmp_lt_u32 s46, 16\ns_cbranch_scc1 L_kloop")
    A("s_mov_b32 s36, s8\ns_mov_b32 s37, s9")
    for u in range(hiK[11] - 11, 12 if xv else hiV[11] - 11):
        ld(u, 36, "s34")
    nv0 = max(hiK[11] - 11, 12 if xv else 0)
    stamp(3)
    A(f"v_lshl_add_u32 v9, v1, 4, s33")
    A("s_waitcnt lgkmcnt(0)")
    t = VTMP
    A(f"ds_read_b128 v[{t}:{t+3}], v9\nds_read_b128 v[{t+4}:{t+7}], v9 offset:1024")
    A(f"s_mov_b32 s47, {SCALE}\ns_mov_b32 s48, {LOG2E}\ns_mov_b32 s49, 0xffff0000")
    A(f"v_subrev_u32 v{VS}, 2048, v{VS}")
    A("s_waitcnt lgkmcnt(0)")
    for rnd in range(2):
        for i in range(4):
            A(f"v_cvt_pk_bf16_f32 v{VSC+i}, v{t+2*i}, v{t+2*i+1}")
        for i in range(4):
            A(f"v_lshlrev_b32 v{t+2*i}, 16, v{VSC+i}\nv_and_b32 v{t+2*i+1}, s49, v{VSC+i}")
        if rnd == 0:
            for i in range(8):
                A(f"v_mul_f32 v{t+i}, s47, v{t+i}")
    A(f"v_max3_f32 v{t+8}, v{t}, v{t+1}, v{t+2}\nv_max3_f32 v{t+9}, v{t+3}, v{t+4}, v{t+5}")
    A(f"v_max3_f32 v{t+8}, v{t+8}, v{t+6}, v{t+7}\nv_max_f32 v{t+8}, v{t+8}, v{t+9}")
    allsum64(t + 8, t + 9, "v_max_f32")
    A(f"s_lshl_b32 s50, s3, 2\ns_add_u32 s50, s50, {L_MX}\nv_mov_b32 v10, s50\nv_mov_b32 v11, {L_MX}")
    A(f"s_mov_b64 exec, 1\nds_write_b32 v10, v{t+8}\ns_mov_b64 exec, -1")
    A("s_waitcnt lgkmcnt(0)\ns_barrier")
    A(f"ds_read_b128 v[{VSC}:{VSC+3}], v11")
    A("s_waitcnt lgkmcnt(0)")
    A(f"v_max3_f32 v{t+8}, v{VSC}, v{VSC+1}, v{VSC+2}\nv_max_f32 v{t+8}, v{t+8}, v{VSC+3}")
    for i in range(8):
        A(f"v_sub_f32 v{t+i}, v{t+i}, v{t+8}")
    for i in range(8):
        A(f"v_mul_f32 v{t+i}, s48, v{t+i}")
    for i in range(8):
        A(f"v_exp_f32 v{t+i}, v{t+i}")
    A(f"v_add_f32 v{t+8}, v{t}, v{t+1}\nv_add_f32 v{t+9}, v{t+2}, v{t+3}\nv_add_f32 v{t+10}, v{t+4}, v{t+5}\nv_add_f32 v{t+11}, v{t+6}, v{t+7}")
    for i in range(8):
        A(f"v_cvt_pk_bf16_f32 v{t+i}, v{t+i}, v{t+i}")
    A(f"ds_write_b128 v9, v[{t}:{t+3}]\nds_write_b128 v9, v[{t+4}:{t+7}] offset:1024")
    A(f"ds_read_b128 v[{VP}:{VP+3}], v{VS}")
    A(f"v_add_f32 v{t+8}, v{t+8}, v{t+9}\nv_add_f32 v{t+10}, v{t+10}, v{t+11}\nv_add_f32 v{t+8}, v{t+8}, v{t+10}")
    allsum64(t + 8, t + 9)
    A(f"s_mov_b64 exec, 1\nds_write_b32 v10, v{t+8} offset:16\ns_mov_b64 exec, -1")
    A("s_mov_b32 s46, 0")
    stamp(4)
    def vloop(lab, hi, x, upto, first):
        A(f"{lab}:")
        step_head(lambda: A(f"s_cselect_b32 s42, 0, {KV_BYTES}"))
        A("s_waitcnt lgkmcnt(0)")
        cur = first
        for gi in range(4):
            for r in range(4):
                A(f"v_and_b32 v{VSEL+r}, v{VP+gi}, v{VM+r}")
            if gi == 3:
                A(f"v_add_u32 v{VS}, 128, v{VS}\nds_read_b128 v[{VP}:{VP+3}], v{VS}")
            else:
                A("s_nop 0")
            for jj in range(3):
                u = 3 * gi + jj
                b = VB + 4 * u
                A(f"s_waitcnt vmcnt({cur-u})")
                if early:
                    cur = issue(cur, hi[u], x)
                A(f"v_mfma_f32_16x16x32_bf16 v[{VA+4*jj}:{VA+4*jj+3}], v[{VSEL}:{VSEL+3}], v[{b}:{b+3}], v[{VA+4*jj}:{VA+4*jj+3}]")
                if not early:
                    cur = issue(cur, hi[u], x)
        A(f"s_mov_b32 s34, s35\ns_add_u32 s46, s46, 1\ns_cmp_lt_u32 s46, {upto}\ns_cbranch_scc1 {lab}")

    vloop("L_vloop", hiV, nv0, 16 - nt, hiV[11] - 12)
    if nt:
        hiT = sched(Wt)
        for u in range(hiV[11] - 11, hiT[11] - 11):
            ld(u, 36, "s34")
        vloop("L_vtail", hiT, 0, 16, hiT[11] - 12)
    A(f"v_lshrrev_b32 v9, 5, v1\ns_lshl_b32 s50, s3, 1\nv_add_u32 v9, s50, v9\nv_mul_u32_u24 v9, 768, v9")
    A(f"v_lshl_add_u32 v9, v3, 5, v9\nv_and_b32 v10, 16, v1\nv_add_u32 v9, v9, v10\nv_add_u32 v9, {L_RD}, v9")
    A("s_mov_b32 s50, 0x00ff00ff\ns_mov_b32 s51, 0xff00ff00\ns_mov_b64 exec, s[50:51]")
    for jj in range(3):
        A(f"ds_write_b128 v9, v[{VA+4*jj}:{VA+4*jj+3}] offset:{jj*256}")
    A("s_mov_b64 exec, -1")
    stamp(5)
    A("s_waitcnt lgkmcnt(0)\ns_barrier")
    if stamps:
        A("s_branch L_stampout")
    else:
        A("s_endpgm")

    VT = 4
    A("L_helper:")
    inhelper[0] = True
    A("s_sub_u32 s33, s3, 4")
    A("s_mul_i32 s34, s33, 1280\nv_lshl_add_u32 v6, v1, 2, s34\nv_mov_b32 v7, 0")
    A("v_mul_u32_u24 v8, 12288, v2\nv_lshl_add_u32 v8, v3, 4, v8")
    A(f"s_mul_i32 s35, s29, {80*12288}\ns_mul_i32 s36, s28, 384\ns_add_u32 s35, s35, s36\ns_mul_i32 s36, s33, {8*12288}\ns_add_u32 s35, s35, s36")
    A(f"s_lshl_b32 s36, s33, 10")
    A(f"s_mov_b32 s42, {640*12288}\ns_mov_b32 s43, 0x20000")
    A("s_waitcnt lgkmcnt(0)")
    A("s_mov_b32 s40, s10\ns_mov_b32 s41, s11")
    A(f"global_load_dword v{VT}, v7, s[26:27] sc1")
    VX = 10
    for k in range(5):
        A(f"global_load_dword v{VX+k}, v6, s[4:5] offset:{k*256}")
    for i in range(3):
        if i == 2:
            A("s_cmp_ge_u32 s33, 2\ns_cbranch_scc1 L_wqdone")
        for cbk in range(3):
            A(f"s_add_u32 m0, s36, {L_WQ + cbk*10240 + i*4096 - cbk*128}")
            if cbk == 0 and i > 0:
                A(f"s_add_u32 s35, s35, {32*12288}")
            else:
                A("s_nop 0")
            A(f"buffer_load_dwordx4 v8, s[40:43], s35 offen offset:{cbk*128} nt lds")
    A("L_wqdone:")
    A(f"v_mov_b32 v9, {L_CNT}\nds_write_b32 v9, v7\ns_waitcnt lgkmcnt(0)")
    A("s_barrier")
    ffn_unit(31, 32, 36)
    A("v_lshrrev_b32 v16, 4, v1\nv_and_b32 v17, 15, v1\nv_bfe_u32 v18, v1, 2, 2\nv_and_b32 v19, 3, v1")
    A("v_lshl_add_u32 v20, v16, 3, v18")
    A("v_lshlrev_b32 v21, 7, v20\nv_lshl_add_u32 v21, v19, 3, v21")
    A("v_mul_u32_u24 v22, 160, v20\nv_lshl_add_u32 v22, v19, 3, v22")
    A("v_lshl_add_u32 v23, v16, 2, v18\nv_lshlrev_b32 v23, 7, v23\nv_lshl_add_u32 v23, v19, 3, v23")
    A(f"v_mul_u32_u24 v24, 1280, v18\nv_add_u32 v24, {L_XN}, v24")
    A(f"s_mov_b32 s60, 0xffff0000\ns_mov_b32 s61, 0x3acccccd\ns_mov_b32 s62, 0x3727c5ac\ns_mov_b32 s63, {LOG2E}")
    A("s_mul_i32 s34, s29, 160\nv_lshl_add_u32 v25, v16, 4, v24\nv_add_u32 v26, s34, v25")
    A("v_lshl_add_u32 v27, v16, 3, v24\nv_add_u32 v27, s34, v27")
    for t in range(3):
        A(f"s_mul_i32 s35, s33, 3\ns_add_u32 s35, s35, {t}\ns_lshr_b32 s36, s35, 2\ns_mul_i32 s36, s36, 10240\ns_and_b32 s35, s35, 3\ns_lshl_b32 s35, s35, 5\ns_add_u32 s35, s35, s36")
        A(f"v_add_u32 v{54+t}, s35, v21\nv_add_u32 v{57+t}, s35, v23")
    A(f"s_lshl_b32 s35, s28, 2\ns_add_u32 s35, s35, s33\ns_lshl_b32 s35, s35, 13\ns_add_u32 s35, s35, {WS_QX}")
    A("s_lshl_b32 s36, s29, 10\ns_add_u32 s36, s36, s35\nv_lshl_add_u32 v28, v1, 4, s36")
    A("s_lshl_b32 s36, s30, 8\ns_add_u32 s36, s36, s35\ns_add_u32 s36, s36, 2048")
    A("v_lshlrev_b32 v29, 10, v16\nv_lshl_add_u32 v29, v17, 4, v29\nv_add_u32 v29, s36, v29")
    stamp(1)
    A("s_waitcnt vmcnt(6)")
    stamp(2)
    f = 30
    A(f"v_add_u32 v{VT}, 1, v{VT}")
    for k in range(5):
        A(f"v_lshlrev_b32 v{f+2*k}, 16, v{VX+k}\nv_and_b32 v{f+2*k+1}, s60, v{VX+k}")
    A(f"v_mov_b32 v{VT+1}, v{VT}")
    A(f"v_add_f32 v40, v{f}, v{f+1}\nv_add_f32 v41, v{f+2}, v{f+3}\nv_add_f32 v42, v{f+4}, v{f+5}\nv_add_f32 v43, v{f+6}, v{f+7}\nv_add_f32 v44, v{f+8}, v{f+9}")
    A("v_add_f32 v40, v40, v41\nv_add_f32 v42, v42, v43\nv_add_f32 v40, v40, v44\nv_add_f32 v40, v40, v42")
    allsum64(40, 41)
    A("v_mul_f32 v40, s61, v40")
    for k in range(10):
        A(f"v_sub_f32 v{42+k}, v{f+k}, v40")
    A("v_mul_f32 v52, v42, v42\nv_mul_f32 v53, v43, v43")
    for k in range(2, 10):
        A(f"v_fmac_f32 v{52+(k&1)}, v{42+k}, v{42+k}")
    A("v_add_f32 v52, v52, v53")
    allsum64(52, 53)
    A("v_mul_f32 v52, s61, v52")
    A("v_cvt_pk_bf16_f32 v40, v40, v52\nv_and_b32 v52, s60, v40\nv_lshlrev_b32 v40, 16, v40")
    A("v_add_f32 v52, s62, v52\nv_cvt_pk_bf16_f32 v52, v52, v52\nv_and_b32 v52, s60, v52\nv_sqrt_f32 v52, v52")
    for k in range(10):
        A(f"v_sub_f32 v{f+k}, v{f+k}, v40")
    A("v_cvt_pk_bf16_f32 v52, v52, v52\nv_and_b32 v52, s60, v52\nv_rcp_f32 v53, v52")
    for k in range(5):
        A(f"v_cvt_pk_bf16_f32 v{42+k}, v{f+2*k}, v{f+2*k+1}")
    for k in range(5):
        A(f"v_lshlrev_b32 v{f+2*k}, 16, v{42+k}\nv_and_b32 v{f+2*k+1}, s60, v{42+k}")
    for k in range(10):
        A(f"v_mul_f32 v{42+k}, v{f+k}, v53")
    for k in range(10):
        A(f"v_fma_f32 v{f+k}, -v{42+k}, v52, v{f+k}")
    for k in range(10):
        A(f"v_fmac_f32 v{42+k}, v{f+k}, v53")
    A(f"v_add_u32 v6, {L_XN}, v6")
    for k in range(5):
        A(f"v_cvt_pk_bf16_f32 v{f+k}, v{42+2*k}, v{42+2*k+1}")
    for k in range(5):
        A(f"ds_write_b32 v6, v{f+k} offset:{k*256}")
    stamp(3)
    A("s_waitcnt vmcnt(0) lgkmcnt(0)")
    A("v_mov_b32 v30, 1\ns_mov_b64 exec, 1\nds_add_u32 v9, v30\ns_mov_b64 exec, -1")
    A("L_hsync:\nds_read_b32 v30, v9\ns_waitcnt lgkmcnt(0)\nv_cmp_gt_u32 vcc, 4, v30\ns_cbranch_vccnz L_hsync")
    stamp(4)
    A("ds_read_b128 v[40:43], v26\nds_read_b128 v[44:47], v26 offset:64\nds_read_b64 v[48:49], v27 offset:128")
    for t in range(3):
        r = 60 + 10 * t
        A(f"ds_read_b64_tr_b16 v[{r}:{r+1}], v{54+t} offset:{L_WQ}\nds_read_b64_tr_b16 v[{r+2}:{r+3}], v{54+t} offset:{L_WQ+512}")
    for t in range(3):
        r = 60 + 10 * t
        A(f"ds_read_b64_tr_b16 v[{r+4}:{r+5}], v{54+t} offset:{L_WQ+4096}\nds_read_b64_tr_b16 v[{r+6}:{r+7}], v{54+t} offset:{L_WQ+4608}")
    A("s_waitcnt lgkmcnt(6)")
    for t in range(3):
        r = 60 + 10 * t
        A(f"v_mfma_f32_16x16x32_bf16 v[{92+4*t}:{95+4*t}], v[40:43], v[{r}:{r+3}], 0")
        A(f"ds_read_b64_tr_b16 v[{r+8}:{r+9}], v{57+t} offset:{L_WQ+8192}")
    A("s_waitcnt lgkmcnt(3)")
    for t in range(3):
        r = 60 + 10 * t
        A(f"v_mfma_f32_16x16x32_bf16 v[{92+4*t}:{95+4*t}], v[44:47], v[{r+4}:{r+7}], v[{92+4*t}:{95+4*t}]")
    A("s_waitcnt lgkmcnt(0)\ns_nop 3")
    for t in range(3):
        r = 60 + 10 * t
        A(f"v_mfma_f32_16x16x16_bf16 v[{92+4*t}:{95+4*t}], v[48:49], v[{r+8}:{r+9}], v[{92+4*t}:{95+4*t}]")
    A(f"v_mov_b32 v107, v{VT}\ns_nop 5")
    A("v_mov_b32 v104, v92\nv_mov_b32 v105, v96\nv_mov_b32 v106, v100")
    A(f"global_store_dwordx4 v28, v[104:107], s[26:27] {qpol}")
    if ack:
        A("s_waitcnt vmcnt(0)")
    if qsleep:
        A(f"s_sleep {qsleep}")
    stamp(5)
    gather([f"global_load_dwordx4 v[60:63], v29, s[26:27] offset:-2048 sc1",
            f"global_load_dwordx4 v[64:67], v29, s[26:27] offset:2048 sc1"],
           [(32, 63), (32, 67)], 64)
    stamp(6)
    A("v_add_f32 v60, v60, v64\nv_add_f32 v61, v61, v65\nv_add_f32 v62, v62, v66\nv_add_f32 v63, v62, 0")
    A("s_mul_i32 s35, s33, 96")
    A("v_permlane16_swap_b32 v60, v61\nv_permlane16_swap_b32 v62, v63")
    A(f"v_add_f32 v60, v60, v61\nv_add_f32 v62, v62, v63\ns_add_u32 s35, s35, {L_Q}\nv_lshl_add_u32 v64, v1, 1, s35")
    A("v_permlane32_swap_b32 v60, v62\nv_add_f32 v60, v60, v62\nv_cvt_pk_bf16_f32 v60, v60, v60")
    A("s_mov_b32 s38, -1\ns_mov_b32 s39, 0xffff\ns_mov_b64 exec, s[38:39]\nds_write_b16 v64, v60\ns_mov_b64 exec, -1")
    A("s_waitcnt lgkmcnt(0)\ns_barrier")
    stamp(7)
    A(f"s_lshl_b32 s35, s32, 2\ns_add_u32 s35, s35, s33\ns_mul_i32 s35, s35, {4*3072}\ns_lshl_b32 s36, s31, 7\ns_add_u32 s35, s35, s36\ns_add_u32 s35, s35, {WS_FX2}")
    A("v_mul_u32_u24 v30, 3072, v16\nv_lshl_add_u32 v30, v17, 3, v30\nv_add_u32 v30, s35, v30")
    A(f"s_mul_i32 s35, s29, 5\ns_lshl_b32 s35, s35, 14\ns_lshl_b32 s36, s28, 7\ns_add_u32 s35, s35, s36\ns_add_u32 s35, s35, {WS_YX}")
    A("v_lshlrev_b32 v31, 12, v16\nv_lshl_add_u32 v31, v17, 3, v31\nv_add_u32 v31, s35, v31\nv_add_u32 v32, 0x10000, v31")
    A("s_lshl_b32 s36, s33, 14\nv_add_u32 v31, s36, v31")
    A(f"s_mul_i32 s35, s28, {8*OX_STRIDE}\ns_add_u32 s35, s35, {WS_OX}\ns_mul_i32 s36, s29, {OX_STRIDE}\ns_add_u32 s36, s36, s35")
    A("v_lshl_add_u32 v33, v1, 4, s36")
    A(f"s_mul_i32 s36, s33, {2*OX_STRIDE}\ns_add_u32 s36, s36, s35\nv_lshl_add_u32 v34, v1, 4, s36\nv_mov_b32 v35, s36")
    if inval:
        A(f"v_xor_b32 v107, -1, v{VT}\nv_mov_b32 v106, v107")
        A("global_store_dwordx2 v31, v[106:107], s[26:27] sc1")
        A("s_cmp_ge_u32 s2, 240\ns_cbranch_scc1 L_inv1\nglobal_store_dwordx2 v30, v[106:107], s[26:27] sc1\nL_inv1:")
        A("s_cmp_lg_u32 s33, 0\ns_cbranch_scc1 L_inv2")
        A("global_store_dwordx2 v32, v[106:107], s[26:27] sc1\nglobal_store_dwordx4 v33, v[104:107], s[26:27] sc1")
        A("s_mov_b64 exec, 1\nglobal_store_dwordx4 v33, v[104:107], s[26:27] offset:1024 sc1\ns_mov_b64 exec, -1")
        A("L_inv2:")
    A(f"s_lshl_b32 s35, s33, 5\nv_add_u32 v36, s35, v22")
    for s in range(6):
        A(f"ds_read_b64_tr_b16 v[{112+4*s}:{113+4*s}], v36 offset:{L_WO+s*5120}\nds_read_b64_tr_b16 v[{114+4*s}:{115+4*s}], v36 offset:{L_WO+s*5120+640}")
    A("s_waitcnt lgkmcnt(0)")
    for s in range(6):
        A(f"ds_read_b64_tr_b16 v[{136+4*s}:{137+4*s}], v22 offset:{L_WO+128+s*5120}\nds_read_b64_tr_b16 v[{138+4*s}:{139+4*s}], v22 offset:{L_WO+128+s*5120+640}")
    A(f"v_add_u32 v36, s35, v21\nv_add_u32 v36, {L_WG}, v36")
    A("s_waitcnt lgkmcnt(0)")
    A(f"s_cmp_ge_u32 s2, {0 if noffn else 240}\ns_cbranch_scc1 L_noffn1")
    A("s_lshl_b32 s35, s32, 7\nv_add_u32 v37, s35, v25")
    A("ds_read_b128 v[48:51], v37\nds_read_b128 v[52:55], v37 offset:64")
    for m in range(2):
        for s in range(2):
            r = 60 + 8 * m + 4 * s
            A(f"ds_read_b64_tr_b16 v[{r}:{r+1}], v36 offset:{m*8192+s*4096}\nds_read_b64_tr_b16 v[{r+2}:{r+3}], v36 offset:{m*8192+s*4096+512}")
    A(f"s_lshl_b32 s35, s31, 2\ns_add_u32 s35, s35, s33\ns_mul_i32 s35, s35, 10240\ns_add_u32 s35, s35, {WS_FX1}")
    A("s_lshl_b32 s36, s32, 10\ns_add_u32 s36, s36, s35\nv_lshl_add_u32 v38, v1, 4, s36")
    A("s_add_u32 s35, s35, 4096\nv_lshl_add_u32 v39, v1, 4, s35\nv_add_u32 v40, 4096, v39")
    A("s_waitcnt lgkmcnt(0)")
    A("v_mfma_f32_16x16x32_bf16 v[92:95], v[48:51], v[60:63], 0\nv_mfma_f32_16x16x32_bf16 v[96:99], v[48:51], v[68:71], 0")
    A("v_mfma_f32_16x16x32_bf16 v[92:95], v[52:55], v[64:67], v[92:95]\nv_mfma_f32_16x16x32_bf16 v[96:99], v[52:55], v[72:75], v[96:99]")
    A(f"v_mov_b32 v106, v{VT}\nv_mov_b32 v107, v{VT}\ns_nop 5\nv_mov_b32 v104, v92\nv_mov_b32 v105, v96")
    if "st1" not in abl:
        A("global_store_dwordx4 v38, v[104:107], s[26:27] sc1")
    if "g1" in abl:
        A("s_branch L_noffn1")
    A(f"s_lshl_b32 s35, s31, 2\ns_add_u32 s35, s35, s33\ns_lshl_b32 s35, s35, 9\ns_add_u32 s35, s35, {WS_HX}\nv_lshl_add_u32 v38, v1, 3, s35")
    A("s_cmp_lg_u32 s32, s33\ns_cbranch_scc1 L_notowner")
    A(f"s_sleep {slow}")
    lds, chk = [], []
    for i in range(10):
        r = 48 + 4 * i
        lds.append(f"global_load_dwordx4 v[{r}:{r+3}], v{39 if i < 8 else 40}, s[26:27] offset:{(i*1024-4096) if i < 8 else (i-8)*1024} sc1")
        chk.append((64, r + 2))
    gather(lds, chk, 64, sleep=slow)
    for c in range(2):
        for i in range(5):
            A(f"v_add_f32 v{48+8*i+c}, v{48+8*i+c}, v{52+8*i+c}")
        A(f"v_add_f32 v{48+c}, v{48+c}, v{56+c}\nv_add_f32 v{64+c}, v{64+c}, v{72+c}\nv_add_f32 v{48+c}, v{48+c}, v{64+c}\nv_add_f32 v{48+c}, v{48+c}, v{80+c}")
    A("v_cvt_pk_bf16_f32 v48, v48, v49\nv_and_b32 v49, s60, v48\nv_lshlrev_b32 v48, 16, v48\nv_max_f32 v48, 0, v48\nv_mul_f32 v48, v48, v49\nv_cvt_pk_bf16_f32 v48, v48, v48")
    A(f"v_mov_b32 v49, v{VT}\nglobal_store_dwordx2 v38, v[48:49], s[26:27] sc1")
    A("L_notowner:")
    A(f"s_sleep {min(127, 4*slow)}")
    gather(["global_load_dwordx2 v[50:51], v38, s[26:27] sc1"], [(32, 51)], 64, sleep=slow)
    A(f"s_lshl_b32 s35, s33, 5\ns_add_u32 s35, s35, {L_HB}\nv_lshlrev_b32 v49, 7, v16\nv_lshl_add_u32 v49, v17, 1, v49\nv_add_u32 v49, s35, v49")
    A("ds_write_b16 v49, v50")
    A("L_noffn1:")
    stamp(8)
    A("s_waitcnt lgkmcnt(0)\ns_barrier")
    A(f"v_mov_b32 v38, {L_MX}\nds_read_b128 v[44:47], v38")
    A(f"s_cmp_ge_u32 s2, {0 if noffn else 240}\ns_cbranch_scc1 L_noffn2")
    A(f"v_lshlrev_b32 v37, 7, v18\nv_lshl_add_u32 v37, v16, 4, v37\nv_add_u32 v37, {L_HB}, v37")
    A("ds_read_b128 v[48:51], v37\nds_read_b128 v[52:55], v37 offset:64")
    for s in range(2):
        r = 60 + 4 * s
        A(f"ds_read_b64_tr_b16 v[{r}:{r+1}], v36 offset:{16384+s*4096}\nds_read_b64_tr_b16 v[{r+2}:{r+3}], v36 offset:{16384+s*4096+512}")
    A("s_waitcnt lgkmcnt(0)")
    A("v_mfma_f32_16x16x32_bf16 v[92:95], v[48:51], v[60:63], 0\nv_mfma_f32_16x16x32_bf16 v[92:95], v[52:55], v[64:67], v[92:95]")
    A(f"s_nop 7\nv_mov_b32 v93, v{VT}")
    if "st2" not in abl:
        A("global_store_dwordx2 v30, v[92:93], s[26:27] sc1")
    A("L_noffn2:")
    A("s_waitcnt lgkmcnt(0)")
    A("v_max3_f32 v44, v44, v45, v46\nv_max_f32 v44, v44, v47")
    A("s_cmp_lg_u32 s33, 3\ns_cbranch_scc1 L_nofin1\ns_cmp_ge_u32 s2, 160\ns_cbranch_scc1 L_nofin1")
    A(f"s_mul_i32 s35, s2, 3072\ns_add_u32 s35, s35, {WS_FX2}\nv_lshl_add_u32 v39, v1, 3, s35")
    A(f"s_lshl_b32 s35, s2, 12\ns_add_u32 s35, s35, {WS_YX}\nv_lshl_add_u32 v40, v1, 3, s35")
    A("s_and_b32 s35, s2, 3\ns_mul_i32 s35, s35, 1280\ns_lshr_b32 s36, s2, 2\ns_lshl_b32 s36, s36, 5\ns_add_u32 s35, s35, s36\nv_lshl_add_u32 v41, v17, 1, s35")
    A("global_load_ushort v43, v41, s[4:5]")
    if noffn or "g2" in abl:
        A("s_waitcnt vmcnt(0)")
    else:
      gather([f"global_load_dwordx2 v[{48+2*i}:{49+2*i}], v39, s[26:27] offset:{i*512} sc1" for i in range(6)],
           [(32, 49 + 2 * i) for i in range(6)], 64, sleep=slow)
    A("v_add_f32 v48, v48, v50\nv_add_f32 v52, v52, v54\nv_add_f32 v56, v56, v58\nv_add_f32 v48, v48, v52\nv_add_f32 v48, v48, v56")
    rowsum(48, 49)
    A("v_cvt_pk_bf16_f32 v48, v48, v48\nv_and_b32 v48, s60, v48\nv_mul_f32 v49, s63, v48\nv_exp_f32 v49, -v49\nv_lshlrev_b32 v43, 16, v43")
    A("v_add_f32 v49, 1.0, v49\nv_rcp_f32 v50, v49\ns_nop 0\nv_mul_f32 v42, v48, v50")
    A("v_cvt_pk_bf16_f32 v42, v42, v42\nv_and_b32 v42, s60, v42")
    A("L_nofin1:")
    A(f"v_lshlrev_b32 v36, 2, v1\nv_add_u32 v36, {L_RD}, v36")
    A(f"s_mul_i32 s35, s33, 384\ns_add_u32 s35, s35, {L_OB}\nv_lshl_add_u32 v37, v1, 1, s35")
    A(f"v_mul_u32_u24 v39, 384, v18\nv_lshl_add_u32 v39, v16, 4, v39\nv_add_u32 v39, {L_OB}, v39")
    stamp(9)
    A("s_barrier")
    stamp(10)
    A("s_cmp_lg_u32 s33, 0\ns_cbranch_scc1 L_nored")
    for i in range(12):
        A(f"ds_read2st64_b32 v[{48+2*i}:{49+2*i}], v36 offset0:{2*i} offset1:{2*i+1}")
    A("ds_read_b128 v[72:75], v38 offset:16")
    A("s_waitcnt lgkmcnt(7)")
    for k in range(3):
        A(f"v_add_f32 v{48+k}, v{48+k}, v{51+k}\nv_add_f32 v{54+k}, v{54+k}, v{57+k}")
    A("s_waitcnt lgkmcnt(1)")
    for k in range(3):
        A(f"v_add_f32 v{60+k}, v{60+k}, v{63+k}\nv_add_f32 v{66+k}, v{66+k}, v{69+k}")
    for k in range(3):
        A(f"v_add_f32 v{48+k}, v{48+k}, v{54+k}\nv_add_f32 v{60+k}, v{60+k}, v{66+k}")
    A(f"v_mov_b32 v51, v{VT}")
    for k in range(3):
        A(f"v_add_f32 v{48+k}, v{48+k}, v{60+k}")
    A("global_store_dwordx4 v33, v[48:51], s[26:27] sc1")
    A("s_waitcnt lgkmcnt(0)")
    A(f"v_add_f32 v72, v72, v73\nv_add_f32 v74, v74, v75\nv_add_f32 v45, v72, v74\nv_mov_b32 v46, v{VT}\nv_mov_b32 v47, v{VT}")
    A("s_mov_b64 exec, 1\nglobal_store_dwordx4 v33, v[44:47], s[26:27] offset:1024 sc1\ns_mov_b64 exec, -1")
    A("L_nored:")
    stamp(11)
    gather([f"global_load_dwordx4 v[52:55], v34, s[26:27] sc1",
            f"global_load_dwordx4 v[56:59], v34, s[26:27] offset:{OX_STRIDE} sc1",
            f"global_load_dwordx4 v[60:63], v35, s[26:27] offset:1024 sc1",
            f"global_load_dwordx4 v[64:67], v35, s[26:27] offset:{OX_STRIDE+1024} sc1"],
           [(32, 55), (32, 59), (64, 62), (64, 66)], 64)
    stamp(12)
    A("v_max_f32 v68, v60, v64\nv_sub_f32 v60, v60, v68\nv_sub_f32 v64, v64, v68\nv_mul_f32 v60, s63, v60\nv_mul_f32 v64, s63, v64")
    A("v_exp_f32 v60, v60\nv_exp_f32 v64, v64\ns_nop 0\nv_mul_f32 v61, v61, v60\nv_fmac_f32 v61, v65, v64\nv_rcp_f32 v61, v61\ns_nop 0")
    A("v_mul_f32 v60, v60, v61\nv_mul_f32 v64, v64, v61")
    for k in range(3):
        A(f"v_mul_f32 v{52+k}, v{52+k}, v60")
    for k in range(3):
        A(f"v_fmac_f32 v{52+k}, v{56+k}, v64")
    A("v_cvt_pk_bf16_f32 v52, v52, v53\nv_cvt_pk_bf16_f32 v54, v54, v54")
    A("ds_write_b16 v37, v52\nds_write_b16_d16_hi v37, v52 offset:128\nds_write_b16 v37, v54 offset:256")
    A("s_waitcnt lgkmcnt(0)\ns_barrier")
    for s in range(6):
        A(f"ds_read_b128 v[{48+4*s}:{51+4*s}], v39 offset:{s*64}")
    for s in range(6):
        A(f"s_waitcnt lgkmcnt({5-s})")
        c0 = "0" if s == 0 else "v[92:95]"
        c1 = "0" if s == 0 else "v[96:99]"
        A(f"v_mfma_f32_16x16x32_bf16 v[92:95], v[{48+4*s}:{51+4*s}], v[{112+4*s}:{115+4*s}], {c0}")
        A(f"v_mfma_f32_16x16x32_bf16 v[96:99], v[{48+4*s}:{51+4*s}], v[{136+4*s}:{139+4*s}], {c1}")
    A(f"s_nop 6\nv_mov_b32 v93, v{VT}\nv_mov_b32 v97, v{VT}")
    A("global_store_dwordx2 v31, v[92:93], s[26:27] sc1")
    A("s_cmp_lg_u32 s33, 0\ns_cbranch_scc1 L_not4\nglobal_store_dwordx2 v32, v[96:97], s[26:27] sc1\nL_not4:")
    stamp(13)
    A("s_cmp_lg_u32 s33, 3\ns_cbranch_scc1 L_fini\ns_cmp_ge_u32 s2, 160\ns_cbranch_scc1 L_fini")
    gather([f"global_load_dwordx2 v[{48+2*i}:{49+2*i}], v40, s[26:27] offset:{i*512} sc1" for i in range(8)],
           [(32, 49 + 2 * i) for i in range(8)], 64)
    stamp(14)
    A("v_add_f32 v48, v48, v50\nv_add_f32 v52, v52, v54\nv_add_f32 v56, v56, v58\nv_add_f32 v60, v60, v62")
    A("v_add_f32 v48, v48, v52\nv_add_f32 v56, v56, v60\nv_add_f32 v48, v48, v56")
    rowsum(48, 49)
    A("v_cvt_pk_bf16_f32 v48, v48, v48\nv_and_b32 v48, s60, v48\nv_mul_f32 v48, v48, v42\nv_cvt_pk_bf16_f32 v48, v48, v48\nv_and_b32 v48, s60, v48")
    A("v_add_f32 v48, v48, v43\nv_cvt_pk_bf16_f32 v48, v48, v48")
    A("s_mov_b64 exec, 0xffff\nglobal_store_short v41, v48, s[22:23]")
    A(f"s_cmp_lg_u32 s2, 0\ns_cbranch_scc1 L_fini\ns_mov_b64 exec, 1\nglobal_store_dword v7, v{VT}, s[26:27] sc1")
    A("L_fini:")
    if stamps:
        A("s_mov_b64 exec, -1")
        stamp(15)
        A("L_stampout:")
        A("s_waitcnt lgkmcnt(0)\nv_writelane_b32 v255, s98, 0")
        A("s_getreg_b32 s96, hwreg(HW_REG_XCC_ID)\nv_writelane_b32 v255, s96, 16")
        A(f"s_lshl_b32 s96, s2, 3\ns_add_u32 s96, s96, s3\ns_lshl_b32 s96, s96, 8\ns_add_u32 s96, s96, {WS_STAMP}\nv_lshl_add_u32 v254, v1, 2, s96")
        A("global_store_dword v254, v255, s[26:27]")
    A("L_end:")
    A("s_endpgm")

    out = HEADER + f"; @launch grid=(256,1,1) block=(512,1,1) lds={L_END}\n"
    out += '.amdgcn_target "amdgcn-amd-amdhsa--gfx950"\n.text\n'
    out += f".globl {NAME}_kernel\n.p2align 8\n.type {NAME}_kernel,@function\n"
    out += A.text()
    nv = 256 if stamps else 160
    out += f""".section .rodata,"a"
.p2align 6
.amdhsa_kernel {NAME}_kernel
  .amdhsa_next_free_vgpr {nv}
  .amdhsa_next_free_sgpr 102
  .amdhsa_accum_offset {nv}
  .amdhsa_group_segment_fixed_size 0
  .amdhsa_kernarg_size 96
  .amdhsa_user_sgpr_count 2
  .amdhsa_user_sgpr_kernarg_segment_ptr 1
  .amdhsa_system_sgpr_workgroup_id_x 1
  .amdhsa_float_denorm_mode_32 3
.end_amdhsa_kernel
"""
    return out


if __name__ == "__main__":
    kw = eval("dict(%s)" % (sys.argv[2] if len(sys.argv) > 2 else ""))
    open(sys.argv[1], "w").write(gen(**kw))
```

```python
import sys

NAME = "recurrent_scan__gqa_block_cached__glu_gated_reglu__decode"

HEADER = """; Kernarg layout for this problem (96 bytes, ptrs only, base s[0:1]):
"""

WS_E = 0
WS_QX = 0x001000
WS_FX1 = 0x110000
WS_F1F = 0x190000
WS_HX = 0x1a0000
WS_FX2 = 0x1b0000
WS_F2F = 0x1f0000
WS_OX = 0x200000
WS_YX = 0x240000
WS_STAMP = 0x400000

L_WQ = 0
L_WO = 30720
L_WG = 61440
L_WU = 69632
L_WD = 77824
L_XN = 86016
L_Q = 91136
L_SC = 91648
L_MX = 99840
L_CNT = 99856
L_HB = 99904
L_RD = 100416
L_OB = 106560
L_LP = 108096
L_END = 109120

CHUNK = 786432
KV_BYTES = 201326592
LOG2E = 0x3fb8aa3b
SCALE = 0x3d93cd3a


class Gen:
    def __init__(self):
        self.L = []
        self.uid = 0

    def __call__(self, s):
        for line in s.split("\n"):
            line = line.strip()
            if line:
                self.L.append(line if line.endswith(":") else "  " + line)

    def label(self, base):
        self.uid += 1
        return f"L_{base}_{self.uid}"

    def text(self):
        return "\n".join(self.L) + "\n"


def gen(rot=1, mapping="xcd", xk=1, xv=0, sleep=1, stamps=False, spin=20000, pw=6, early=True, ack=True, slow=16,
        Wk=(5,), Wv=(5,), Wt=None, nt=0, pairint=False, noffn=False, hs=None, qsleep=0):
    A = Gen()
    inhelper = [False]
    VT = 4

    def stamp(i):
        if stamps and not (inhelper[0] and hs is not None and i not in hs):
            A(f"s_memrealtime s[96:97]\ns_waitcnt lgkmcnt(0)\nv_writelane_b32 v255, s96, {i}")

    def allsum64(v, t, op="v_add_f32"):
        dpp = op + "_dpp"
        A("s_nop 1")
        A(f"{dpp} v{v}, v{v}, v{v} quad_perm:[1,0,3,2] row_mask:0xf bank_mask:0xf\ns_nop 1")
        A(f"{dpp} v{v}, v{v}, v{v} quad_perm:[2,3,0,1] row_mask:0xf bank_mask:0xf\ns_nop 1")
        A(f"{dpp} v{v}, v{v}, v{v} row_half_mirror row_mask:0xf bank_mask:0xf\ns_nop 1")
        A(f"{dpp} v{v}, v{v}, v{v} row_mirror row_mask:0xf bank_mask:0xf")
        A(f"v_mov_b32 v{t}, v{v}\ns_nop 1\nv_permlane16_swap_b32 v{v}, v{t}\n{op} v{v}, v{v}, v{t}")
        A(f"v_mov_b32 v{t}, v{v}\ns_nop 1\nv_permlane32_swap_b32 v{v}, v{t}\n{op} v{v}, v{v}, v{t}")

    def rows_to_batches(r):
        A(f"s_nop 1\nv_permlane16_swap_b32 v{r}, v{r+1}\nv_permlane16_swap_b32 v{r+2}, v{r+3}")
        A(f"v_add_f32 v{r}, v{r}, v{r+1}\nv_add_f32 v{r+2}, v{r+2}, v{r+3}\ns_nop 1")
        A(f"v_permlane32_swap_b32 v{r}, v{r+2}\nv_add_f32 v{r}, v{r}, v{r+2}")

    def pk_tree(regs, nw):
        regs = list(regs)
        while len(regs) > 1:
            nxt = []
            for i in range(0, len(regs) - 1, 2):
                for k in range(0, nw, 2):
                    a, b = regs[i] + k, regs[i + 1] + k
                    A(f"v_pk_add_f32 v[{a}:{a+1}], v[{a}:{a+1}], v[{b}:{b+1}]")
                nxt.append(regs[i])
            if len(regs) & 1:
                nxt.append(regs[-1])
            regs = nxt

    def gather(loads, checks, sbase=64, sleep=sleep, lanes=None):
        full = "-1"
        if lanes is not None:
            full = "s[92:93]"
            m = (1 << lanes) - 1
            A(f"s_mov_b32 s92, {m & 0xffffffff:#x}\ns_mov_b32 s93, {m >> 32:#x}\ns_mov_b64 exec, s[92:93]")
        for ld in loads:
            A(ld)
        top = A.label("poll")
        done = A.label("got")
        n = len(loads)
        acc = sbase + 2 * n
        cnt = acc + 2
        assert cnt < 92
        A(f"s_mov_b32 s{cnt}, {spin}")
        A(f"{top}:")
        A("s_waitcnt vmcnt(0)")
        for i, (kind, r) in enumerate(checks):
            m = sbase + 2 * i
            if kind == 64:
                A(f"v_cmp_ne_u64 s[{m}:{m+1}], v[{r}:{r+1}], v[{VT}:{VT+1}]")
            elif kind == 8:
                A(f"v_cmp_ne_u32_sdwa s[{m}:{m+1}], v{r}, v{VT} src0_sel:BYTE_0 src1_sel:BYTE_0")
            else:
                A(f"v_cmp_ne_u32 s[{m}:{m+1}], v{r}, v{VT}")
        o2 = sbase + 2 if n > 1 else sbase
        A(f"s_or_b64 s[{acc}:{acc+1}], s[{sbase}:{sbase+1}], s[{o2}:{o2+1}]")
        for i in range(2, n):
            m = sbase + 2 * i
            A(f"s_or_b64 s[{acc}:{acc+1}], s[{acc}:{acc+1}], s[{m}:{m+1}]")
        A(f"s_cbranch_scc0 {done}")
        A(f"s_sub_u32 s{cnt}, s{cnt}, 1\ns_cbranch_scc1 {done}")
        if sleep:
            A(f"s_sleep {sleep}")
        for i, ld in enumerate(loads):
            m = sbase + 2 * i
            A(f"s_wqm_b64 exec, s[{m}:{m+1}]")
            A(ld)
        A(f"s_mov_b64 exec, {full}")
        A(f"s_branch {top}")
        A(f"{done}:")
        if lanes is not None:
            A("s_mov_b64 exec, -1")

    def lds_arrive(vaddr, off, vone):
        A(f"s_mov_b64 exec, 1\nds_add_u32 v{vaddr}, v{vone} offset:{off}\ns_mov_b64 exec, -1")

    def lds_wait(vaddr, off, vt, n, slp=0):
        lab = A.label("lw")
        A(f"{lab}:")
        if slp:
            A(f"s_sleep {slp}")
        A(f"ds_read_b32 v{vt}, v{vaddr} offset:{off}\ns_waitcnt lgkmcnt(0)\nv_cmp_gt_u32 vcc, {n}, v{vt}\ns_cbranch_vccnz {lab}")

    def ffn_unit(scb, srs, tmp):
        A(f"s_min_u32 s{srs}, s2, 239\ns_mul_i32 s{scb}, s{srs}, 205\ns_lshr_b32 s{scb}, s{scb}, 11\ns_mul_i32 s{tmp}, s{scb}, 10\ns_sub_u32 s{srs}, s{srs}, s{tmp}")

    def sched(Wl):
        hi = [u + Wl[u % len(Wl)] for u in range(12)]
        for _ in range(2):
            for u in range(12):
                hi[u] = max(hi[u], hi[u - 1] - (12 if u == 0 else 0))
        assert all(hi[u] <= u + 11 for u in range(12))
        return hi

    A(f"{NAME}_kernel:")
    A("s_load_dwordx16 s[4:19], s[0:1], 0")
    A("s_load_dwordx8 s[20:27], s[0:1], 64")
    A("s_cmp_ge_u32 s2, 256\ns_cbranch_scc1 L_end")
    if stamps:
        A("s_memrealtime s[98:99]")
    A("v_lshrrev_b32 v2, 6, v0\nv_and_b32 v1, 63, v0")
    if mapping == "xcd":
        A("s_and_b32 s28, s2, 7\ns_lshl_b32 s28, s28, 2\ns_lshr_b32 s29, s2, 6\ns_add_u32 s28, s28, s29")
        A("s_bfe_u32 s29, s2, 0x30003")
    elif mapping == "p2":
        A("s_bfe_u32 s28, s2, 0x50001\ns_lshr_b32 s29, s2, 6\ns_lshl_b32 s29, s29, 1\ns_and_b32 s30, s2, 1\ns_add_u32 s29, s29, s30")
    elif mapping == "lin":
        A("s_lshr_b32 s28, s2, 3\ns_and_b32 s29, s2, 7")
    A("v_readfirstlane_b32 s3, v2")
    A("s_lshr_b32 s30, s29, 1")
    A("v_lshrrev_b32 v2, 3, v1\nv_and_b32 v3, 7, v1")
    if stamps:
        A("v_mov_b32 v255, 0")
    A("s_cmp_ge_u32 s3, 4\ns_cbranch_scc1 L_helper")

    VOK, VON, VOV = 4, 8, 12
    VS, VSV = 16, 17
    VM = 20
    VQ = 24
    VA = 36
    VD = 48
    VSEL = 56
    VP = 60
    VSC = 64
    VTMP = 68
    VB = 80
    hiK, hiV = sched(Wk), sched(Wv)
    A("v_mul_u32_u24 v18, 205, v1\nv_lshrrev_b32 v18, 11, v18\nv_mul_u32_u24 v19, 10, v18\nv_sub_u32 v19, v1, v19")
    A("v_mul_u32_u24 v18, 1280, v18\nv_lshl_add_u32 v18, v19, 4, v18")
    A(f"s_mov_b32 s46, {6144*1280}\ns_mov_b32 s47, 0x20000")
    A(f"s_mul_i32 s60, s28, {192*1280}\ns_mul_i32 s61, s29, 160\ns_add_u32 s60, s60, s61\ns_mul_i32 s61, s3, {48*1280}\ns_add_u32 s60, s60, s61")
    A(f"s_mul_i32 s61, s3, 7680")
    A("s_mov_b32 s62, -1\ns_mov_b32 s63, 0x0fffffff")
    A("s_waitcnt lgkmcnt(0)")
    A("s_mov_b32 s44, s12\ns_mov_b32 s45, s13")
    A("s_barrier")
    issued = [0]

    def pace():
        issued[0] += 1
        if issued[0] > pw:
            A(f"s_waitcnt vmcnt({pw-1})")

    A("s_mov_b64 exec, s[62:63]")
    for i in range(8):
        A(f"s_add_u32 m0, s61, {L_WO + i*960}")
        A(f"s_add_u32 s60, s60, {6*1280}" if i else "s_nop 0")
        pace()
        A(f"buffer_load_dwordx4 v18, s[44:47], s60 offen nt lds")
        if i == pw - 1 or (i == 7 and pw > 8):
            A("s_mov_b64 exec, -1")
            A("s_lshl_b32 s31, s30, 5\ns_add_u32 s31, s31, s28\ns_lshl_b32 s31, s31, 1\ns_and_b32 s32, s29, 1\ns_add_u32 s31, s31, s32")
            if pairint:
                STEP, SPAN = 98304, 2 * CHUNK
                A(f"s_lshr_b32 s31, s31, 1\ns_mul_i32 s33, s32, 49152\ns_mul_i32 s32, s31, {SPAN}\ns_add_u32 s32, s32, s33")
            else:
                STEP, SPAN = 49152, CHUNK
                A(f"s_mul_i32 s32, s31, {CHUNK}")
            A(f"s_mul_i32 s33, s3, 12288\ns_add_u32 s32, s32, s33")
            A(f"v_mul_u32_u24 v{VOV}, 384, v2\nv_lshl_add_u32 v{VOV}, v3, 4, v{VOV}\nv_add_u32 v{VOV}, s32, v{VOV}")
            A(f"v_lshrrev_b32 v68, 5, v1\nv_bfe_u32 v69, v1, 2, 2\nv_lshl_add_u32 v70, v68, 2, v69\nv_mul_u32_u24 v{VOK}, 384, v70")
            A(f"v_bfe_u32 v70, v1, 4, 1\nv_and_b32 v71, 3, v1\nv_lshlrev_b32 v71, 4, v71\nv_lshl_add_u32 v71, v70, 6, v71")
            A(f"v_add3_u32 v{VOK}, v{VOK}, v71, s32\nv_add_u32 v19, {L_Q}, v71")
            A(f"v_cmp_eq_u32 s[66:67], v68, v69")
            for gi in range(1, 4):
                A(f"v_add_u32 v{VOK+gi}, {gi*3072}, v{VOK}\nv_add_u32 v{VOV+gi}, {gi*3072}, v{VOV}")
            for gi in range(4):
                A(f"v_mov_b32 v{VON+gi}, v{VOK+gi}")
            A(f"s_mul_i32 s34, s31, {rot}\ns_and_b32 s34, s34, 15\ns_mul_i32 s34, s34, {STEP}")
            A(f"s_mov_b32 s38, {KV_BYTES}\ns_mov_b32 s39, 0x20000\ns_mov_b32 s42, {KV_BYTES}\ns_mov_b32 s43, 0x20000")
            A("s_mov_b32 s36, s6\ns_mov_b32 s37, s7\ns_mov_b32 s40, s6\ns_mov_b32 s41, s7")
            A(f"s_lshl_b32 s33, s3, 11\ns_add_u32 s33, s33, {L_SC}\nv_lshl_add_u32 v{VSV}, v2, 4, s33")
            A(f"v_bfe_u32 v68, v1, 2, 1\nv_lshrrev_b32 v69, 4, v1\nv_lshl_add_u32 v68, v68, 2, v69\nv_lshl_add_u32 v{VS}, v68, 4, s33")
            A(f"v_lshrrev_b32 v68, 1, v3\nv_and_b32 v69, 1, v3\nv_lshlrev_b32 v69, 4, v69\nv_mov_b32 v70, 0xffff\nv_lshlrev_b32 v69, v69, v70")
            for r in range(4):
                A(f"v_cmp_eq_u32 vcc, {r}, v68\nv_mov_b32 v{VA+2*r}, 0\nv_mov_b32 v{VA+2*r+1}, 0\nv_cndmask_b32 v{VM+r}, 0, v69, vcc")
            for r in range(8, 12):
                A(f"v_mov_b32 v{VA+r}, 0")
            ffn_unit(64, 65, 68)
            A("v_mul_u32_u24 v68, 3072, v2\nv_lshl_add_u32 v68, v3, 4, v68\nv_mul_u32_u24 v69, 1280, v2\nv_lshl_add_u32 v69, v3, 4, v69")
            for (base, lo) in ((48, 16), (52, 18), (56, 20)):
                A(f"s_mov_b32 s{base}, s{lo}\ns_mov_b32 s{base+1}, s{lo+1}\ns_mov_b32 s{base+2}, {640*3072}\ns_mov_b32 s{base+3}, 0x20000")
            A(f"s_mul_i32 s68, s65, {64*3072}\ns_lshl_b32 s69, s64, 7\ns_add_u32 s68, s68, s69\ns_mul_i32 s69, s3, {16*3072}\ns_add_u32 s68, s68, s69")
            A(f"s_mul_i32 s70, s64, {64*1280}\ns_lshl_b32 s69, s65, 7\ns_add_u32 s70, s70, s69\ns_mul_i32 s69, s3, {16*1280}\ns_add_u32 s70, s70, s69")
            A("s_lshl_b32 s69, s3, 11")
            A("s_mov_b64 exec, s[62:63]")
    A("s_mov_b64 exec, -1")
    A("s_cmp_ge_u32 s2, 240\ns_cbranch_scc1 L_noffnld")
    for i in range(2):
        for (lb, vr, srd, so) in ((L_WG, 68, 48, 68), (L_WU, 68, 52, 68), (L_WD, 69, 56, 70)):
            A(f"s_add_u32 m0, s69, {lb + i*1024}\ns_nop 0")
            pace()
            A(f"buffer_load_dwordx4 v{vr}, s[{srd}:{srd+3}], s{so} offen nt lds")
        if i == 0:
            A(f"s_add_u32 s68, s68, {8*3072}\ns_add_u32 s70, s70, {8*1280}")
    A("L_noffnld:")

    def ld(u, vo, srd, soff):
        gi, jj = divmod(u, 3)
        r = VB + u * 4
        A(f"buffer_load_dwordx4 v[{r}:{r+3}], v{vo+gi}, s[{srd}:{srd+3}], {soff} offen offset:{jj*128} nt")

    nk0 = 12 if xk else hiK[11] - 11
    for u in range(nk0):
        pace()
        ld(u, VOK, 36, "s34")
    A("s_mov_b32 s44, 0x00110011\ns_mov_b32 s45, 0x00110011")
    A(f"s_waitcnt vmcnt({min(nk0, pw)})")
    stamp(1)
    A("s_barrier")
    for jj in range(3):
        A(f"ds_read_b128 v[{VQ+4*jj}:{VQ+4*jj+3}], v19 offset:{jj*128}")
    stamp(2)
    A("s_mov_b32 s46, 0")
    A("s_waitcnt lgkmcnt(0)")
    for r in range(12):
        A(f"v_cndmask_b32 v{VQ+r}, 0, v{VQ+r}, s[66:67]")

    def next_step():
        A(f"s_add_u32 s35, s34, {STEP}\ns_cmp_ge_u32 s35, {SPAN}\ns_cselect_b32 s35, 0, s35")
        A("s_cmp_eq_u32 s46, 15")

    def issue(cur, upto, x, voc, von):
        while cur < upto:
            cur += 1
            if cur >= 12:
                ld(cur - 12, von, 40, "s35")
            elif cur < x:
                sk = A.label("skip")
                A(f"s_cmp_eq_u32 s46, 0\ns_cbranch_scc1 {sk}")
                ld(cur, voc, 36, "s34")
                A(f"{sk}:")
            else:
                ld(cur, voc, 36, "s34")
        return cur

    def kreduce(g):
        d = VD + 4 * (g & 1)
        t = VSC + g
        A(f"v_add_f32_dpp v{t}, v{d+1}, v{d} quad_perm:[1,1,1,1] row_mask:0xf bank_mask:0xf")
        A(f"v_add_f32_dpp v{t}, v{d+2}, v{t} quad_perm:[2,2,2,2] row_mask:0xf bank_mask:0xf")
        A(f"v_add_f32_dpp v{t}, v{d+3}, v{t} quad_perm:[3,3,3,3] row_mask:0xf bank_mask:0xf")

    A("L_kloop:")
    next_step()
    A("s_cbranch_scc0 L_knl\ns_mov_b32 s40, s8\ns_mov_b32 s41, s9")
    for gi in range(4):
        A(f"v_mov_b32 v{VON+gi}, v{VOV+gi}")
    A("L_knl:")
    cur = hiK[11] - 12
    for gi in range(4):
        d = VD + 4 * (gi & 1)
        for jj in range(3):
            u = 3 * gi + jj
            b = VB + 4 * u
            A(f"s_waitcnt vmcnt({cur-u})")
            if early:
                cur = issue(cur, hiK[u], nk0, VOK, VON)
            c = "0" if jj == 0 else f"v[{d}:{d+3}]"
            A(f"v_mfma_f32_16x16x32_bf16 v[{d}:{d+3}], v[{b}:{b+3}], v[{VQ+4*jj}:{VQ+4*jj+3}], {c}")
            if not early:
                cur = issue(cur, hiK[u], nk0, VOK, VON)
        if gi:
            A("s_nop 1")
            kreduce(gi - 1)
    A("s_mov_b32 s34, s35\ns_add_u32 s46, s46, 1\ns_nop 2")
    kreduce(3)
    A(f"s_mov_b64 exec, s[44:45]\nds_write_b128 v{VS}, v[{VSC}:{VSC+3}]\ns_mov_b64 exec, -1")
    A(f"v_add_u32 v{VS}, 128, v{VS}")
    A("s_cmp_lt_u32 s46, 16\ns_cbranch_scc1 L_kloop")
    A("s_mov_b32 s36, s8\ns_mov_b32 s37, s9")
    for u in range(hiK[11] - 11, 12 if xv else hiV[11] - 11):
        ld(u, VOV, 36, "s34")
    nv0 = max(hiK[11] - 11, 12 if xv else 0)
    stamp(3)
    t = VTMP
    A(f"v_lshl_add_u32 v19, v1, 4, s33")
    A(f"ds_read_b128 v[{t}:{t+3}], v19\nds_read_b128 v[{t+4}:{t+7}], v19 offset:1024")
    A(f"s_mov_b32 s47, {SCALE}\ns_mov_b32 s48, {LOG2E}\ns_mov_b32 s49, 0xffff0000")
    A(f"s_lshl_b32 s50, s3, 2\ns_add_u32 s50, s50, {L_MX}\nv_mov_b32 v18, s50")
    A(f"s_lshl_b32 s50, s3, 8\ns_add_u32 s50, s50, {L_LP}\nv_lshl_add_u32 v{VS}, v1, 2, s50")
    A("s_waitcnt lgkmcnt(0)")
    for rnd in range(2):
        for i in range(4):
            A(f"v_cvt_pk_bf16_f32 v{VSC+i}, v{t+2*i}, v{t+2*i+1}")
        for i in range(4):
            A(f"v_lshlrev_b32 v{t+2*i}, 16, v{VSC+i}\nv_and_b32 v{t+2*i+1}, s49, v{VSC+i}")
        if rnd == 0:
            for i in range(8):
                A(f"v_mul_f32 v{t+i}, s47, v{t+i}")
    A(f"v_max3_f32 v{t+8}, v{t}, v{t+1}, v{t+2}\nv_max3_f32 v{t+9}, v{t+3}, v{t+4}, v{t+5}")
    A(f"v_max3_f32 v{t+8}, v{t+8}, v{t+6}, v{t+7}\nv_max_f32 v{t+8}, v{t+8}, v{t+9}")
    allsum64(t + 8, t + 9, "v_max_f32")
    for i in range(8):
        A(f"v_sub_f32 v{t+i}, v{t+i}, v{t+8}")
    A(f"s_mov_b64 exec, 1\nds_write_b32 v18, v{t+8}\ns_mov_b64 exec, -1")
    for i in range(8):
        A(f"v_mul_f32 v{t+i}, s48, v{t+i}")
    for i in range(8):
        A(f"v_exp_f32 v{t+i}, v{t+i}")
    A(f"v_add_f32 v{t+8}, v{t}, v{t+1}\nv_add_f32 v{t+9}, v{t+2}, v{t+3}\nv_add_f32 v{t+10}, v{t+4}, v{t+5}\nv_add_f32 v{t+11}, v{t+6}, v{t+7}")
    for i in range(8):
        A(f"v_cvt_pk_bf16_f32 v{t+i}, v{t+i}, v{t+i}")
    A(f"ds_write_b128 v19, v[{t}:{t+3}]\nds_write_b128 v19, v[{t+4}:{t+7}] offset:1024")
    A(f"ds_read_b128 v[{VP}:{VP+3}], v{VSV}")
    A(f"v_add_f32 v{t+8}, v{t+8}, v{t+9}\nv_add_f32 v{t+10}, v{t+10}, v{t+11}\nv_add_f32 v{t+8}, v{t+8}, v{t+10}")
    A(f"v_mov_b32 v18, {L_CNT}\nv_mov_b32 v19, 1")
    A(f"ds_write_b32 v{VS}, v{t+8}")
    lds_arrive(18, 8, 19)
    A("s_mov_b32 s46, 0")
    stamp(4)

    def vloop(lab, hi, x, upto, first):
        A(f"{lab}:")
        next_step()
        A(f"s_cselect_b32 s42, 0, {KV_BYTES}")
        A("s_waitcnt lgkmcnt(0)")
        cur = first
        for gi in range(4):
            for r in range(4):
                A(f"v_and_b32 v{VSEL+r}, v{VP+gi}, v{VM+r}")
            if gi == 3:
                A(f"v_add_u32 v{VSV}, 128, v{VSV}\nds_read_b128 v[{VP}:{VP+3}], v{VSV}")
            else:
                A("s_nop 0")
            for jj in range(3):
                u = 3 * gi + jj
                b = VB + 4 * u
                A(f"s_waitcnt vmcnt({cur-u})")
                if early:
                    cur = issue(cur, hi[u], x, VOV, VOV)
                A(f"v_mfma_f32_16x16x32_bf16 v[{VA+4*jj}:{VA+4*jj+3}], v[{VSEL}:{VSEL+3}], v[{b}:{b+3}], v[{VA+4*jj}:{VA+4*jj+3}]")
                if not early:
                    cur = issue(cur, hi[u], x, VOV, VOV)
        A(f"s_mov_b32 s34, s35\ns_add_u32 s46, s46, 1\ns_cmp_lt_u32 s46, {upto}\ns_cbranch_scc1 {lab}")

    A(f"v_lshrrev_b32 v18, 5, v1\ns_lshl_b32 s50, s3, 1\nv_add_u32 v18, s50, v18\nv_mul_u32_u24 v18, 768, v18")
    A(f"v_lshl_add_u32 v18, v3, 5, v18\nv_and_b32 v19, 16, v1\nv_add_u32 v18, v18, v19\nv_add_u32 v18, {L_RD}, v18")
    A("s_mov_b32 s50, 0x00ff00ff\ns_mov_b32 s51, 0xff00ff00")
    vloop("L_vloop", hiV, nv0, 16 - nt, hiV[11] - 12)
    if nt:
        hiT = sched(Wt)
        for u in range(hiV[11] - 11, hiT[11] - 11):
            ld(u, VOV, 36, "s34")
        vloop("L_vtail", hiT, 0, 16, hiT[11] - 12)
    A("s_mov_b64 exec, s[50:51]\ns_nop 0")
    for jj in range(3):
        A(f"ds_write_b128 v18, v[{VA+4*jj}:{VA+4*jj+3}] offset:{jj*256}")
    if stamps:
        A("s_mov_b64 exec, -1")
    stamp(5)
    A("s_waitcnt lgkmcnt(0)\ns_barrier")
    if stamps:
        A("s_branch L_stampout")
    else:
        A("s_endpgm")

    A("L_helper:")
    inhelper[0] = True
    A("s_sub_u32 s33, s3, 4")
    A("s_mul_i32 s34, s33, 1280\nv_lshl_add_u32 v6, v1, 2, s34\nv_mov_b32 v7, 0")
    A("v_mul_u32_u24 v8, 12288, v2\nv_lshl_add_u32 v8, v3, 4, v8")
    A(f"s_mul_i32 s35, s29, {80*12288}\ns_mul_i32 s36, s28, 384\ns_add_u32 s35, s35, s36\ns_mul_i32 s36, s33, {8*12288}\ns_add_u32 s35, s35, s36")
    A(f"s_lshl_b32 s36, s33, 10")
    A(f"s_mov_b32 s42, {640*12288}\ns_mov_b32 s43, 0x20000")
    A(f"v_mov_b32 v9, {L_CNT}\nv_mov_b32 v10, 0\nv_mov_b32 v11, 0\nv_mov_b32 v12, 0\nds_write_b96 v9, v[10:12]")
    A("s_waitcnt lgkmcnt(0)")
    A("s_mov_b32 s40, s10\ns_mov_b32 s41, s11")
    A(f"global_load_dword v{VT}, v7, s[26:27] sc1")
    VX = 10
    for k in range(5):
        A(f"global_load_dword v{VX+k}, v6, s[4:5] offset:{k*256}")
    for i in range(3):
        if i == 2:
            A("s_cmp_ge_u32 s33, 2\ns_cbranch_scc1 L_wqdone")
        for cbk in range(3):
            A(f"s_add_u32 m0, s36, {L_WQ + cbk*10240 + i*4096 - cbk*128}")
            if cbk == 0 and i > 0:
                A(f"s_add_u32 s35, s35, {32*12288}")
            else:
                A("s_nop 0")
            A(f"buffer_load_dwordx4 v8, s[40:43], s35 offen offset:{cbk*128} nt lds")
    A("L_wqdone:")
    A("s_barrier")
    ffn_unit(31, 32, 36)
    A("v_lshrrev_b32 v16, 4, v1\nv_and_b32 v17, 15, v1\nv_bfe_u32 v18, v1, 2, 2\nv_and_b32 v19, 3, v1")
    A("v_lshl_add_u32 v20, v16, 3, v18")
    A("v_lshlrev_b32 v21, 7, v20\nv_lshl_add_u32 v21, v19, 3, v21")
    A("v_mul_u32_u24 v22, 160, v20\nv_lshl_add_u32 v22, v19, 3, v22")
    A("v_lshl_add_u32 v23, v16, 2, v18\nv_lshlrev_b32 v23, 7, v23\nv_lshl_add_u32 v23, v19, 3, v23")
    A(f"v_mul_u32_u24 v24, 1280, v18\nv_add_u32 v24, {L_XN}, v24")
    A(f"s_mov_b32 s60, 0xffff0000\ns_mov_b32 s61, 0x3acccccd\ns_mov_b32 s62, 0x3727c5ac\ns_mov_b32 s63, {LOG2E}\ns_mov_b32 s59, 0xff")
    A("s_mul_i32 s34, s29, 160\nv_lshl_add_u32 v26, v16, 4, v24\nv_add_u32 v26, s34, v26")
    A("v_lshl_add_u32 v27, v16, 3, v24\nv_add_u32 v27, s34, v27")
    for t in range(3):
        A(f"s_mul_i32 s35, s33, 3\ns_add_u32 s35, s35, {t}\ns_lshr_b32 s36, s35, 2\ns_mul_i32 s36, s36, 10240\ns_and_b32 s35, s35, 3\ns_lshl_b32 s35, s35, 5\ns_add_u32 s35, s35, s36")
        A(f"v_add_u32 v{54+t}, s35, v21\nv_add_u32 v{57+t}, s35, v23")
    A(f"s_lshl_b32 s35, s28, 2\ns_add_u32 s35, s35, s33\ns_lshl_b32 s35, s35, 13\ns_add_u32 s35, s35, {WS_QX}")
    A("s_lshl_b32 s36, s29, 10\ns_add_u32 s36, s36, s35\nv_lshl_add_u32 v28, v1, 4, s36")
    A("s_lshl_b32 s36, s30, 8\ns_add_u32 s36, s36, s35\ns_add_u32 s36, s36, 2048")
    A("v_lshlrev_b32 v29, 10, v16\nv_lshl_add_u32 v29, v17, 4, v29\nv_add_u32 v29, s36, v29")
    A(f"s_mul_i32 s35, s33, 96\ns_add_u32 s35, s35, {L_Q}\nv_lshl_add_u32 v25, v1, 1, s35\nv_mov_b32 v15, 1")
    stamp(1)
    A("s_waitcnt vmcnt(6)")
    stamp(2)
    f = 30
    A(f"v_add_u32 v{VT}, 1, v{VT}")
    for k in range(5):
        A(f"v_lshlrev_b32 v{f+2*k}, 16, v{VX+k}\nv_and_b32 v{f+2*k+1}, s60, v{VX+k}")
    A(f"v_mov_b32 v{VT+1}, v{VT}")
    A(f"v_add_f32 v40, v{f}, v{f+1}\nv_add_f32 v41, v{f+2}, v{f+3}\nv_add_f32 v42, v{f+4}, v{f+5}\nv_add_f32 v43, v{f+6}, v{f+7}\nv_add_f32 v44, v{f+8}, v{f+9}")
    A("v_add_f32 v40, v40, v41\nv_add_f32 v42, v42, v43\nv_add_f32 v40, v40, v44\nv_add_f32 v40, v40, v42")
    allsum64(40, 41)
    A("v_mul_f32 v40, s61, v40")
    for k in range(10):
        A(f"v_sub_f32 v{42+k}, v{f+k}, v40")
    A("v_mul_f32 v52, v42, v42\nv_mul_f32 v53, v43, v43")
    for k in range(2, 10):
        A(f"v_fmac_f32 v{52+(k&1)}, v{42+k}, v{42+k}")
    A("v_add_f32 v52, v52, v53")
    allsum64(52, 53)
    A("v_mul_f32 v52, s61, v52")
    A("v_cvt_pk_bf16_f32 v40, v40, v52\nv_and_b32 v52, s60, v40\nv_lshlrev_b32 v40, 16, v40")
    A("v_add_f32 v52, s62, v52\nv_cvt_pk_bf16_f32 v52, v52, v52\nv_and_b32 v52, s60, v52\nv_sqrt_f32 v52, v52")
    for k in range(10):
        A(f"v_sub_f32 v{f+k}, v{f+k}, v40")
    A("v_cvt_pk_bf16_f32 v52, v52, v52\nv_and_b32 v52, s60, v52\nv_rcp_f32 v53, v52")
    for k in range(5):
        A(f"v_cvt_pk_bf16_f32 v{42+k}, v{f+2*k}, v{f+2*k+1}")
    for k in range(5):
        A(f"v_lshlrev_b32 v{f+2*k}, 16, v{42+k}\nv_and_b32 v{f+2*k+1}, s60, v{42+k}")
    for k in range(10):
        A(f"v_mul_f32 v{42+k}, v{f+k}, v53")
    for k in range(10):
        A(f"v_fma_f32 v{f+k}, -v{42+k}, v52, v{f+k}")
    for k in range(10):
        A(f"v_fmac_f32 v{42+k}, v{f+k}, v53")
    A(f"v_add_u32 v6, {L_XN}, v6")
    for k in range(5):
        A(f"v_cvt_pk_bf16_f32 v{f+k}, v{42+2*k}, v{42+2*k+1}")
    for k in range(5):
        A(f"ds_write_b32 v6, v{f+k} offset:{k*256}")
    stamp(3)
    A("s_waitcnt vmcnt(0)")
    lds_arrive(9, 0, 15)
    lds_wait(9, 0, 30, 4)
    stamp(4)
    A("ds_read_b128 v[40:43], v26\nds_read_b128 v[44:47], v26 offset:64\nds_read_b64 v[48:49], v27 offset:128")
    for t in range(3):
        r = 60 + 10 * t
        A(f"ds_read_b64_tr_b16 v[{r}:{r+1}], v{54+t} offset:{L_WQ}\nds_read_b64_tr_b16 v[{r+2}:{r+3}], v{54+t} offset:{L_WQ+512}")
    for t in range(3):
        r = 60 + 10 * t
        A(f"ds_read_b64_tr_b16 v[{r+4}:{r+5}], v{54+t} offset:{L_WQ+4096}\nds_read_b64_tr_b16 v[{r+6}:{r+7}], v{54+t} offset:{L_WQ+4608}")
    A("s_waitcnt lgkmcnt(6)")
    for t in range(3):
        r = 60 + 10 * t
        A(f"v_mfma_f32_16x16x32_bf16 v[{92+4*t}:{95+4*t}], v[40:43], v[{r}:{r+3}], 0")
        A(f"ds_read_b64_tr_b16 v[{r+8}:{r+9}], v{57+t} offset:{L_WQ+8192}")
    A("s_waitcnt lgkmcnt(3)")
    for t in range(3):
        r = 60 + 10 * t
        A(f"v_mfma_f32_16x16x32_bf16 v[{92+4*t}:{95+4*t}], v[44:47], v[{r+4}:{r+7}], v[{92+4*t}:{95+4*t}]")
    A("s_waitcnt lgkmcnt(0)\ns_nop 3")
    for t in range(3):
        r = 60 + 10 * t
        A(f"v_mfma_f32_16x16x16_bf16 v[{92+4*t}:{95+4*t}], v[48:49], v[{r+8}:{r+9}], v[{92+4*t}:{95+4*t}]")
    A(f"v_mov_b32 v107, v{VT}\ns_nop 5")
    A("v_mov_b32 v104, v92\nv_mov_b32 v105, v96\nv_mov_b32 v106, v100")
    A("global_store_dwordx4 v28, v[104:107], s[26:27] sc1")
    if ack:
        A("s_waitcnt vmcnt(0)")
    if qsleep:
        A(f"s_sleep {qsleep}")
    stamp(5)
    gather([f"global_load_dwordx4 v[60:63], v29, s[26:27] offset:-2048 sc1",
            f"global_load_dwordx4 v[64:67], v29, s[26:27] offset:2048 sc1"], [(32, 63), (32, 67)])
    stamp(6)
    A("v_add_f32 v60, v60, v64\nv_add_f32 v61, v61, v65\nv_add_f32 v62, v62, v66\nv_add_f32 v63, v62, 0")
    A("s_mov_b32 s38, -1")
    A("v_permlane16_swap_b32 v60, v61\nv_permlane16_swap_b32 v62, v63")
    A(f"v_add_f32 v60, v60, v61\nv_add_f32 v62, v62, v63\ns_mov_b32 s39, 0xffff\ns_nop 0")
    A("v_permlane32_swap_b32 v60, v62\nv_add_f32 v60, v60, v62\nv_cvt_pk_bf16_f32 v60, v60, v60")
    A("s_mov_b64 exec, s[38:39]\nds_write_b16 v25, v60\ns_mov_b64 exec, -1")
    A("s_waitcnt lgkmcnt(0)\ns_barrier")
    stamp(7)
    A(f"s_mul_i32 s35, s29, {5*8192}\ns_lshl_b32 s36, s28, 8\ns_add_u32 s35, s35, s36\ns_add_u32 s35, s35, {WS_YX}")
    A("v_lshl_add_u32 v31, v17, 4, s35\nv_add_u32 v32, 0x8000, v31\ns_lshl_b32 s36, s33, 13\nv_add_u32 v31, s36, v31")
    A(f"s_lshl_b32 s35, s28, 13\ns_add_u32 s35, s35, {WS_OX}\ns_lshl_b32 s36, s29, 10\ns_add_u32 s36, s36, s35\nv_lshl_add_u32 v33, v1, 4, s36")
    A(f"s_lshl_b32 s36, s33, 11\ns_add_u32 s36, s36, s35\nv_lshl_add_u32 v34, v1, 4, s36")
    A(f"s_lshl_b32 s58, s33, 5\nv_add_u32 v36, s58, v22")
    for s in range(6):
        A(f"ds_read_b64_tr_b16 v[{112+4*s}:{113+4*s}], v36 offset:{L_WO+s*5120}\nds_read_b64_tr_b16 v[{114+4*s}:{115+4*s}], v36 offset:{L_WO+s*5120+640}")
    A("s_waitcnt lgkmcnt(0)")
    for s in range(6):
        A(f"ds_read_b64_tr_b16 v[{136+4*s}:{137+4*s}], v22 offset:{L_WO+128+s*5120}\nds_read_b64_tr_b16 v[{138+4*s}:{139+4*s}], v22 offset:{L_WO+128+s*5120+640}")
    A(f"v_add_u32 v36, s58, v21\nv_add_u32 v36, {L_WG}, v36")
    A("s_waitcnt lgkmcnt(0)")
    A(f"s_cmp_ge_u32 s2, {0 if noffn else 240}\ns_cbranch_scc1 L_noffn")
    A(f"v_mul_u32_u24 v37, 1280, v19\nv_lshl_add_u32 v37, v16, 4, v37\ns_lshl_b32 s35, s32, 7\ns_add_u32 s35, s35, {L_XN}\nv_add_u32 v37, s35, v37")
    A("ds_read_b128 v[48:51], v37\nds_read_b128 v[52:55], v37 offset:64")
    for m in range(2):
        for s in range(2):
            r = 60 + 8 * m + 4 * s
            A(f"ds_read_b64_tr_b16 v[{r}:{r+1}], v36 offset:{m*8192+s*4096}\nds_read_b64_tr_b16 v[{r+2}:{r+3}], v36 offset:{m*8192+s*4096+512}")
    A(f"s_lshl_b32 s57, s31, 2\ns_add_u32 s57, s57, s33")
    A(f"s_mul_i32 s35, s57, 5120\ns_add_u32 s35, s35, {WS_FX1}\nv_lshl_add_u32 v39, v1, 4, s35\ns_lshl_b32 s36, s32, 9\nv_add_u32 v38, s36, v39")
    A(f"s_lshl_b32 s35, s57, 6\ns_add_u32 s35, s35, {WS_F1F}\nv_lshl_add_u32 v41, v1, 2, s35\ns_lshl_b32 s36, s32, 2\ns_add_u32 s35, s35, s36\nv_mov_b32 v40, s35")
    A(f"s_lshl_b32 s35, s57, 8\ns_add_u32 s35, s35, {WS_HX}\nv_lshl_add_u32 v42, v17, 4, s35")
    A("v_cmp_eq_u32 vcc, 1, v16")
    A("s_waitcnt lgkmcnt(0)")
    A("v_mfma_f32_16x16x32_bf16 v[92:95], v[48:51], v[60:63], 0\nv_mfma_f32_16x16x32_bf16 v[96:99], v[48:51], v[68:71], 0")
    A("v_mfma_f32_16x16x32_bf16 v[92:95], v[52:55], v[64:67], v[92:95]\nv_mfma_f32_16x16x32_bf16 v[96:99], v[52:55], v[72:75], v[96:99]")
    A("s_nop 7")
    for r in range(4):
        A(f"v_cndmask_b32 v{104+r}, v{92+r}, v{96+r}, vcc")
    A("s_mov_b32 exec_hi, 0\nglobal_store_dwordx4 v38, v[104:107], s[26:27] sc1")
    A(f"s_waitcnt vmcnt(0)\ns_mov_b64 exec, 1\nglobal_store_dword v40, v{VT}, s[26:27] sc1\ns_mov_b64 exec, -1")
    A("s_cmp_lg_u32 s32, s33\ns_cbranch_scc1 L_notowner")
    gather(["global_load_dword v48, v41, s[26:27] sc1"], [(32, 48)], sleep=slow, lanes=10)
    A("v_add_u32 v39, 1024, v39")
    for i in range(5):
        A(f"global_load_dwordx4 v[{48+4*i}:{51+4*i}], v39, s[26:27] offset:{i*1024-1024} sc1")
    A("s_waitcnt vmcnt(0)")
    pk_tree([48, 52, 56, 60, 64], 4)
    for r in range(4):
        A(f"v_mov_b32 v{52+r}, v{48+r}")
    A("s_nop 0")
    for r in range(4):
        A(f"v_permlane32_swap_b32 v{48+r}, v{52+r}")
    pk_tree([48, 52], 4)
    for r in range(4):
        A(f"v_mov_b32 v{52+r}, v{48+r}")
    A("s_nop 0")
    for r in range(4):
        A(f"v_permlane16_swap_b32 v{48+r}, v{52+r}")
    for r in range(4):
        A(f"v_cvt_pk_bf16_f32 v{48+r}, v{48+r}, v{52+r}")
    for r in range(4):
        A(f"v_and_b32 v{52+r}, s60, v{48+r}\nv_lshlrev_b32 v{48+r}, 16, v{48+r}\nv_max_f32 v{48+r}, 0, v{48+r}\nv_mul_f32 v{48+r}, v{48+r}, v{52+r}")
    A(f"v_cvt_pk_bf16_f32 v48, v48, v49\nv_cvt_pk_bf16_f32 v49, v50, v51\nv_mov_b32 v50, v{VT}\nv_mov_b32 v51, v{VT}")
    A("s_mov_b64 exec, 0xffff\nglobal_store_dwordx4 v42, v[48:51], s[26:27] sc1\ns_mov_b64 exec, -1")
    A("L_notowner:")
    A(f"s_sleep {min(127, 4*slow)}")
    gather(["global_load_dwordx4 v[52:55], v42, s[26:27] sc1"], [(64, 54)], sleep=slow, lanes=16)
    A(f"s_add_u32 s35, s58, {L_HB}\nv_lshl_add_u32 v48, v17, 1, s35\ns_mov_b64 exec, 0xffff")
    A("ds_write_b16 v48, v52\nds_write_b16_d16_hi v48, v52 offset:128\nds_write_b16 v48, v53 offset:256\nds_write_b16_d16_hi v48, v53 offset:384")
    lds_arrive(9, 4, 15)
    A(f"v_lshlrev_b32 v37, 7, v19\nv_lshl_add_u32 v37, v16, 4, v37\nv_add_u32 v37, {L_HB}, v37")
    A(f"s_lshl_b32 s57, s32, 2\ns_add_u32 s57, s57, s33")
    A(f"s_mul_i32 s35, s57, 6144\ns_lshl_b32 s36, s31, 8\ns_add_u32 s35, s35, s36\ns_add_u32 s35, s35, {WS_FX2}\nv_lshl_add_u32 v38, v17, 4, s35")
    A(f"s_lshl_b32 s35, s57, 7\ns_lshl_b32 s36, s31, 2\ns_add_u32 s35, s35, s36\ns_add_u32 s35, s35, {WS_F2F}\nv_mov_b32 v40, s35")
    lds_wait(9, 4, 30, 4, slp=4)
    A("ds_read_b128 v[48:51], v37\nds_read_b128 v[52:55], v37 offset:64")
    for s in range(2):
        r = 60 + 4 * s
        A(f"ds_read_b64_tr_b16 v[{r}:{r+1}], v36 offset:{16384+s*4096}\nds_read_b64_tr_b16 v[{r+2}:{r+3}], v36 offset:{16384+s*4096+512}")
    A("s_waitcnt lgkmcnt(0)")
    A("v_mfma_f32_16x16x32_bf16 v[92:95], v[48:51], v[60:63], 0\nv_mfma_f32_16x16x32_bf16 v[92:95], v[52:55], v[64:67], v[92:95]")
    A("s_nop 6\ns_mov_b64 exec, 0xffff\nglobal_store_dwordx4 v38, v[92:95], s[26:27] sc1")
    A(f"s_waitcnt vmcnt(0)\ns_mov_b64 exec, 1\nglobal_store_dword v40, v{VT}, s[26:27] sc1\ns_mov_b64 exec, -1")
    A("L_noffn:")
    stamp(8)
    A("s_cmp_lg_u32 s33, 3\ns_cbranch_scc1 L_nofin1\ns_cmp_ge_u32 s2, 40\ns_cbranch_scc1 L_nofin1")
    A(f"s_mul_i32 s35, s2, 6144\ns_add_u32 s35, s35, {WS_FX2+2048}\nv_lshl_add_u32 v39, v1, 4, s35")
    A(f"s_lshl_b32 s35, s2, 7\ns_add_u32 s35, s35, {WS_F2F}\nv_lshl_add_u32 v38, v1, 2, s35")
    A(f"s_lshl_b32 s35, s2, 13\ns_add_u32 s35, s35, {WS_YX+4096}\nv_lshl_add_u32 v40, v1, 4, s35")
    A("s_lshl_b32 s35, s2, 5\nv_mul_u32_u24 v41, 1280, v16\nv_lshl_add_u32 v41, v17, 1, v41\nv_add_u32 v41, s35, v41")
    A("global_load_ushort v43, v41, s[4:5]")
    if not noffn:
        gather(["global_load_dword v48, v38, s[26:27] sc1"], [(32, 48)], sleep=slow, lanes=24)
    for i in range(6):
        A(f"global_load_dwordx4 v[{48+4*i}:{51+4*i}], v39, s[26:27] offset:{i*1024-2048} sc1")
    A("s_waitcnt vmcnt(0)")
    pk_tree([48 + 4 * i for i in range(6)], 4)
    rows_to_batches(48)
    A("v_cvt_pk_bf16_f32 v48, v48, v48\nv_and_b32 v48, s60, v48\nv_mul_f32 v49, s63, v48\nv_exp_f32 v49, -v49\nv_lshlrev_b32 v43, 16, v43")
    A("v_add_f32 v49, 1.0, v49\nv_rcp_f32 v50, v49\ns_nop 0\nv_mul_f32 v42, v48, v50")
    A("v_cvt_pk_bf16_f32 v42, v42, v42\nv_and_b32 v42, s60, v42")
    A("L_nofin1:")
    A("s_cmp_lg_u32 s33, 0\ns_cbranch_scc1 L_nofac")
    lds_wait(9, 8, 30, 4, slp=32)
    A(f"v_mov_b32 v38, {L_MX}\nds_read_b128 v[48:51], v38\nv_lshlrev_b32 v38, 2, v1\nv_add_u32 v38, {L_LP}, v38")
    for r in range(4):
        A(f"ds_read_b32 v{52+r}, v38 offset:{r*256}")
    A("s_waitcnt lgkmcnt(0)")
    A("v_max3_f32 v44, v48, v49, v50\nv_max_f32 v44, v44, v51")
    for r in range(4):
        A(f"v_sub_f32 v{48+r}, v{48+r}, v44")
    for r in range(4):
        A(f"v_mul_f32 v{48+r}, s63, v{48+r}")
    for r in range(4):
        A(f"v_exp_f32 v{100+2*r}, v{48+r}")
    A("v_mul_f32 v45, v52, v100\nv_fmac_f32 v45, v53, v102\nv_fmac_f32 v45, v54, v104\nv_fmac_f32 v45, v55, v106")
    allsum64(45, 46)
    A("L_nofac:")
    A(f"v_lshlrev_b32 v36, 4, v1\nv_add_u32 v36, {L_RD}, v36")
    A(f"s_mul_i32 s35, s33, 384\ns_add_u32 s35, s35, {L_OB}\nv_lshl_add_u32 v37, v1, 3, s35")
    A(f"v_mul_u32_u24 v39, 384, v19\nv_lshl_add_u32 v39, v16, 4, v39\nv_add_u32 v39, {L_OB}, v39")
    A("s_mov_b32 s54, 0\ns_mov_b32 s55, 0xf0000\ns_mov_b32 s56, -1\ns_mov_b32 s57, 0xfffff")
    stamp(9)
    A("s_barrier")
    stamp(10)
    A("s_cmp_lg_u32 s33, 0\ns_cbranch_scc1 L_nored")
    for p in range(8):
        A(f"ds_read_b128 v[{48+4*p}:{51+4*p}], v36 offset:{p*768}")
    for w in range(4):
        a, b = 48 + 8 * w, 52 + 8 * w
        A(f"s_waitcnt lgkmcnt({6-2*w})")
        A(f"v_pk_add_f32 v[{a}:{a+1}], v[{a}:{a+1}], v[{b}:{b+1}]\nv_pk_add_f32 v[{a+2}:{a+3}], v[{a+2}:{a+3}], v[{b+2}:{b+3}]")
        for k in (0, 2):
            if w == 0:
                A(f"v_pk_mul_f32 v[{84+k}:{85+k}], v[{a+k}:{a+k+1}], v[100:101] op_sel_hi:[1,0]")
            else:
                A(f"v_pk_fma_f32 v[{84+k}:{85+k}], v[{a+k}:{a+k+1}], v[{100+2*w}:{101+2*w}], v[{84+k}:{85+k}] op_sel_hi:[1,0,1]")
    A("v_cndmask_b32 v84, v84, v44, s[54:55]\nv_cndmask_b32 v85, v85, v45, s[54:55]")
    A(f"v_bfi_b32 v84, s59, v{VT}, v84")
    A("s_mov_b64 exec, s[56:57]\nglobal_store_dwordx4 v33, v[84:87], s[26:27] sc1")
    A("L_nored:")
    stamp(11)
    gather([f"global_load_dwordx4 v[52:55], v34, s[26:27] sc1",
            f"global_load_dwordx4 v[56:59], v34, s[26:27] offset:1024 sc1"], [(8, 52), (8, 56)], lanes=52)
    stamp(12)
    A("v_readlane_b32 s35, v52, 48\nv_readlane_b32 s36, v56, 48\nv_readlane_b32 s37, v53, 48\nv_readlane_b32 s38, v57, 48")
    A("s_and_b32 s35, s35, s60\ns_and_b32 s36, s36, s60\nv_mov_b32 v60, s35\nv_sub_f32 v60, s36, v60")
    A("v_mul_f32 v60, s63, v60\nv_min_f32 v64, 0, v60\nv_max_f32 v60, 0, v60")
    A("v_exp_f32 v64, v64\nv_exp_f32 v60, -v60\ns_nop 0\nv_mul_f32 v61, s38, v64\nv_fmac_f32 v61, s37, v60\nv_rcp_f32 v61, v61\ns_nop 0")
    A("v_mul_f32 v60, v60, v61\nv_mul_f32 v64, v64, v61")
    A("v_pk_mul_f32 v[52:53], v[52:53], v[60:61] op_sel_hi:[1,0]\nv_pk_mul_f32 v[54:55], v[54:55], v[60:61] op_sel_hi:[1,0]")
    A("v_pk_fma_f32 v[52:53], v[56:57], v[64:65], v[52:53] op_sel_hi:[1,0,1]\nv_pk_fma_f32 v[54:55], v[58:59], v[64:65], v[54:55] op_sel_hi:[1,0,1]")
    A("s_mov_b32 s38, -1\ns_mov_b32 s39, 0xffff")
    A("v_cvt_pk_bf16_f32 v52, v52, v53\nv_cvt_pk_bf16_f32 v53, v54, v55")
    A("s_mov_b64 exec, s[38:39]\nds_write_b64 v37, v[52:53]\ns_mov_b64 exec, -1")
    A("s_waitcnt lgkmcnt(0)\ns_barrier")
    for s in range(6):
        A(f"ds_read_b128 v[{48+4*s}:{51+4*s}], v39 offset:{s*64}")
    for s in range(6):
        A(f"s_waitcnt lgkmcnt({5-s})")
        c0 = "0" if s == 0 else "v[92:95]"
        c1 = "0" if s == 0 else "v[96:99]"
        A(f"v_mfma_f32_16x16x32_bf16 v[92:95], v[{48+4*s}:{51+4*s}], v[{112+4*s}:{115+4*s}], {c0}")
        A(f"v_mfma_f32_16x16x32_bf16 v[96:99], v[{48+4*s}:{51+4*s}], v[{136+4*s}:{139+4*s}], {c1}")
    A(f"s_mov_b64 exec, 0xffff\ns_nop 5\nv_bfi_b32 v92, s59, v{VT}, v92\nv_bfi_b32 v96, s59, v{VT}, v96")
    A("global_store_dwordx4 v31, v[92:95], s[26:27] sc1")
    A("s_cmp_lg_u32 s33, 0\ns_cbranch_scc1 L_not4\nglobal_store_dwordx4 v32, v[96:99], s[26:27] sc1\nL_not4:")
    A("s_mov_b64 exec, -1")
    stamp(13)
    A("s_cmp_lg_u32 s33, 3\ns_cbranch_scc1 L_fini\ns_cmp_ge_u32 s2, 40\ns_cbranch_scc1 L_fini")
    gather([f"global_load_dwordx4 v[{48+4*i}:{51+4*i}], v40, s[26:27] offset:{i*1024-4096} sc1" for i in range(8)],
           [(8, 48 + 4 * i) for i in range(8)])
    stamp(14)
    pk_tree([48 + 4 * i for i in range(8)], 4)
    rows_to_batches(48)
    A("v_cvt_pk_bf16_f32 v48, v48, v48\nv_and_b32 v48, s60, v48\nv_mul_f32 v48, v48, v42\nv_cvt_pk_bf16_f32 v48, v48, v48\nv_and_b32 v48, s60, v48")
    A("v_add_f32 v48, v48, v43\nv_cvt_pk_bf16_f32 v48, v48, v48")
    A("global_store_short v41, v48, s[22:23] sc1")
    A(f"s_cmp_lg_u32 s2, 0\ns_cbranch_scc1 L_fini\ns_mov_b64 exec, 1\nglobal_store_dword v7, v{VT}, s[26:27] sc1")
    A("L_fini:")
    if stamps:
        A("s_mov_b64 exec, -1")
        stamp(15)
        A("L_stampout:")
        A("s_waitcnt lgkmcnt(0)\nv_writelane_b32 v255, s98, 0")
        A("s_getreg_b32 s96, hwreg(HW_REG_XCC_ID)\nv_writelane_b32 v255, s96, 16")
        A(f"s_lshl_b32 s96, s2, 3\ns_add_u32 s96, s96, s3\ns_lshl_b32 s96, s96, 8\ns_add_u32 s96, s96, {WS_STAMP}\nv_lshl_add_u32 v254, v1, 2, s96")
        A("global_store_dword v254, v255, s[26:27]")
    A("L_end:")
    A("s_endpgm")

    out = HEADER + f"; @launch grid=(256,1,1) block=(512,1,1) lds={L_END}\n"
    out += '.amdgcn_target "amdgcn-amd-amdhsa--gfx950"\n.text\n'
    out += f".globl {NAME}_kernel\n.p2align 8\n.type {NAME}_kernel,@function\n"
    out += A.text()
    nv = 256 if stamps else 160
    out += f""".section .rodata,"a"
.p2align 6
.amdhsa_kernel {NAME}_kernel
  .amdhsa_next_free_vgpr {nv}
  .amdhsa_next_free_sgpr 102
  .amdhsa_accum_offset {nv}
  .amdhsa_group_segment_fixed_size 0
  .amdhsa_kernarg_size 96
  .amdhsa_user_sgpr_count 2
  .amdhsa_user_sgpr_kernarg_segment_ptr 1
  .amdhsa_system_sgpr_workgroup_id_x 1
  .amdhsa_float_denorm_mode_32 3
.end_amdhsa_kernel
"""
    return out


if __name__ == "__main__":
    kw = eval("dict(%s)" % (sys.argv[2] if len(sys.argv) > 2 else ""))
    open(sys.argv[1], "w").write(gen(**kw))
```
